```python
import torch

def _softmax(x, axis=-1):
    return torch.softmax(x, dim=axis)
def _gelu(x):
    return torch.nn.functional.gelu(x, approximate="tanh")
def _silu(x):
    return torch.nn.functional.silu(x)
def _sigmoid(x):
    return torch.sigmoid(x)
def _layernorm(x, axis=-1, eps=1e-5):
    m = x.mean(dim=axis, keepdim=True)
    v = x.var(dim=axis, keepdim=True, unbiased=False)
    return (x - m) / torch.sqrt(v + eps)
def _scatter_add(tgt, idx, src, axis=0):
    return tgt.clone().index_add_(axis, idx, src)
def _segment_sum(src, seg, n):
    out = torch.zeros((n,) + src.shape[1:], dtype=src.dtype)
    return out.index_add_(0, seg, src)
def _pad(x, pw):
    flat = tuple(v for pair in reversed(pw) for v in pair)
    return torch.nn.functional.pad(x, flat)

kernel_name = 'standalone__gqa_block_cached__near_ridge'

def setup_inputs():

    _w = (lambda a: (lambda t: t.to(torch.bfloat16) if t.is_floating_point() else t)(torch.as_tensor(a)))
    B, Sq, D = 8, 160, 448
    Hq, Hkv, Sk, Dh = 16, 8, 1024, 256
    assert Hq % Hkv == 0, (Hq, Hkv)
    return {
        "x": _w((lambda *s: torch.randn(*s, dtype=torch.bfloat16) * 0.8)(B, Sq, D)),
        "k_cache": _w((lambda *s: torch.randn(*s, dtype=torch.bfloat16) * 0.8)(B, Hkv, Sk, Dh)),
        "v_cache": _w((lambda *s: torch.randn(*s, dtype=torch.bfloat16) * 0.05)(B, Hkv, Sk, Dh)),
        "wq": _w((lambda *s: torch.randn(*s, dtype=torch.bfloat16) * 0.8)(D, Hq * Dh) * (D ** -0.5)),
        "wo": _w((lambda *s: torch.randn(*s, dtype=torch.bfloat16) * 0.05)(Hq * Dh, D) * ((Hq * Dh) ** -0.5)),
    }

def reference(x, k_cache, v_cache, wq, wo):
    B, Sq, D = x.shape
    Hq, Dh = 16, 256
    Hkv = k_cache.shape[1]
    rep = Hq // Hkv
    q = (lambda x, *d: x.permute(*d))((x @ wq).reshape(B, Sq, Hq, Dh), 0, 2, 1, 3)
    k = (lambda x, n, axis: torch.repeat_interleave(x, n, dim=axis))(k_cache, rep, axis=1)
    v = (lambda x, n, axis: torch.repeat_interleave(x, n, dim=axis))(v_cache, rep, axis=1)
    scores = torch.einsum("bhqd,bhkd->bhqk", q, k) * (Dh ** -0.5)
    p = _softmax(scores, axis=-1)
    o = torch.einsum("bhqk,bhkd->bhqd", p, v)
    return (lambda x, *d: x.permute(*d))(o, 0, 2, 1, 3).reshape(B, Sq, Hq * Dh) @ wo
```

```python
import sys

HEADER = open('standalone__gqa_block_cached__near_ridge.s.ref').read().split('; Override launch')[0]

class A:
    def __init__(s): s.l = []
    def __call__(s, x): s.l.append('    ' + x)
    def lab(s, x): s.l.append(x + ':')
    def raw(s, x): s.l.append(x)
    def text(s): return '\n'.join(s.l) + '\n'

def srd(a, d, base, nbytes):
    a(f's_mov_b32 s{d}, s{base}')
    a(f's_and_b32 s{d+1}, s{base+1}, 0xffff')
    a(f's_mov_b32 s{d+2}, {nbytes}')
    a(f's_mov_b32 s{d+3}, 0x00020000')

def kdesc(a, name, vgpr, accum, sgpr=102):
    a.raw('.section .rodata,"a"')
    a.raw('.p2align 6')
    a.raw(f'.amdhsa_kernel {name}')
    a.raw(f'  .amdhsa_next_free_vgpr {vgpr}')
    a.raw(f'  .amdhsa_next_free_sgpr {sgpr}')
    a.raw(f'  .amdhsa_accum_offset {accum}')
    a.raw('  .amdhsa_group_segment_fixed_size 0')
    a.raw('  .amdhsa_kernarg_size 64')
    a.raw('  .amdhsa_user_sgpr_count 2')
    a.raw('  .amdhsa_user_sgpr_kernarg_segment_ptr 1')
    a.raw('  .amdhsa_system_sgpr_workgroup_id_x 1')
    a.raw('.end_amdhsa_kernel')
    a.raw('.text')

def kstart(a, name):
    a.raw('.text')
    a.raw(f'.globl {name}')
    a.raw('.p2align 8')
    a.raw(f'.type {name},@function')
    a.lab(name)

def attn_v0(a, name='attn0_kernel'):
    kstart(a, name)
    a('s_cmp_ge_u32 s2, 1280')
    a(f's_cbranch_scc1 L_{name}_done')
    a('s_load_dwordx16 s[4:19], s[0:1], 0')
    a('s_mov_b32 s20, 429496730')
    a('s_mul_hi_u32 s21, s2, s20')
    a('s_mul_i32 s22, s21, 10')
    a('s_sub_u32 s22, s2, s22')
    a('s_lshr_b32 s23, s21, 4')
    a('s_and_b32 s24, s21, 15')
    a('s_lshr_b32 s25, s21, 1')
    a('v_and_b32 v1, 15, v0')
    a('v_lshrrev_b32 v2, 4, v0')
    a('s_waitcnt lgkmcnt(0)')
    srd(a, 28, 4, 8*160*448*2)
    srd(a, 32, 6, 8*8*1024*256*2)
    srd(a, 36, 8, 8*8*1024*256*2)
    srd(a, 40, 10, 448*4096*2)
    srd(a, 44, 12, 4096*448*2)
    srd(a, 48, 18, 16*1280*448*4)
    a('s_mul_i32 s26, s23, 160')
    a('s_lshl_b32 s27, s22, 4')
    a('s_add_u32 s26, s26, s27')
    a('v_add_u32 v3, s26, v1')
    a('s_movk_i32 s27, 896')
    a('v_mul_lo_u32 v4, v3, s27')
    a('v_lshl_add_u32 v4, v2, 4, v4')
    XF = 16
    for ks in range(14):
        a(f'buffer_load_dwordx4 v[{XF+4*ks}:{XF+4*ks+3}], v4, s[28:31], 0 offen offset:{ks*64}')
    a('v_lshrrev_b32 v5, 5, v0')
    a('v_and_b32 v6, 31, v0')
    a('v_lshlrev_b32 v6, 4, v6')
    a('v_lshl_add_u32 v7, v5, 13, v6')
    a('v_lshlrev_b32 v8, 4, v0')
    a('v_lshrrev_b32 v9, 2, v1')
    a('v_and_b32 v10, 3, v0')
    a('v_lshl_add_u32 v11, v2, 3, v9')
    a('v_lshlrev_b32 v11, 9, v11')
    a('v_lshl_add_u32 v11, v10, 4, v11')
    a('v_lshl_add_u32 v12, v2, 2, v9')
    a('v_lshlrev_b32 v13, 9, v12')
    a('v_lshl_add_u32 v13, v10, 3, v13')
    a('s_movk_i32 s27, 896')
    a('v_mul_lo_u32 v14, v12, s27')
    a('v_lshl_add_u32 v14, v10, 3, v14')
    QA = 72
    for i in range(64): a(f'v_mov_b32 v{QA+i}, 0')
    FR = 136
    for ks in range(14):
        a(f's_lshl_b32 s52, s24, 9')
        a(f's_add_u32 s52, s52, {ks*32*8192}')
        for i in range(16):
            a(f's_mov_b32 m0, {i*1024}')
            a(f's_add_u32 s53, s52, {i*2*8192}')
            a(f'buffer_load_dwordx4 v7, s[40:43], s53 offen lds')
        a('s_waitcnt vmcnt(0)')
        for T in range(16):
            s, t = T >> 1, T & 1
            off = (32*s + 4*t)*2
            a(f'ds_read_b64_tr_b16 v[{FR}:{FR+1}], v11 offset:{off}')
            a(f'ds_read_b64_tr_b16 v[{FR+2}:{FR+3}], v11 offset:{off+2048}')
            a('s_waitcnt lgkmcnt(0)')
            a(f'v_mfma_f32_16x16x32_bf16 v[{QA+4*T}:{QA+4*T+3}], v[{FR}:{FR+3}], v[{XF+4*ks}:{XF+4*ks+3}], v[{QA+4*T}:{QA+4*T+3}]')
            a('s_nop 7')
    a('s_nop 7')
    a('s_nop 7')
    QF = 144
    for s in range(8):
        for t in range(2):
            T = 2*s+t
            a(f'v_cvt_pk_bf16_f32 v{QF+4*s+2*t}, v{QA+4*T}, v{QA+4*T+1}')
            a(f'v_cvt_pk_bf16_f32 v{QF+4*s+2*t+1}, v{QA+4*T+2}, v{QA+4*T+3}')
    a('v_lshlrev_b32 v15, 9, v1')
    a('v_lshl_add_u32 v15, v2, 4, v15')
    a('s_lshl_b32 s54, s25, 19')
    KF = 176
    for i in range(256): a(f'v_accvgpr_write_b32 a{i}, 0')
    for kb in range(32):
        for t in range(2):
            a(f's_add_u32 s55, s54, {(kb*32+16*t)*512}')
            for s in range(8):
                r = KF + (t*8+s)*4
                a(f'buffer_load_dwordx4 v[{r}:{r+3}], v15, s[32:35], s55 offen offset:{s*64}')
        a('s_waitcnt vmcnt(0)')
        for t in range(2):
            acc = (2*kb+t)*4
            for s in range(8):
                r = KF + (t*8+s)*4
                a(f'v_mfma_f32_16x16x32_bf16 a[{acc}:{acc+3}], v[{r}:{r+3}], v[{QF+4*s}:{QF+4*s+3}], a[{acc}:{acc+3}]')
        a('s_nop 7')
    a('s_nop 7')
    a('s_nop 7')
    a('v_accvgpr_read_b32 v16, a0')
    for i in range(1, 256):
        a(f'v_accvgpr_read_b32 v17, a{i}')
        a('v_max_f32 v16, v16, v17')
    a('v_xor_b32 v18, 16, v0')
    a('v_lshlrev_b32 v18, 2, v18')
    a('v_xor_b32 v19, 32, v0')
    a('v_lshlrev_b32 v19, 2, v19')
    a('ds_bpermute_b32 v17, v18, v16')
    a('s_waitcnt lgkmcnt(0)')
    a('v_max_f32 v16, v16, v17')
    a('ds_bpermute_b32 v17, v19, v16')
    a('s_waitcnt lgkmcnt(0)')
    a('v_max_f32 v16, v16, v17')
    import struct, math
    c = math.log2(math.e)/16.0
    cbits = struct.unpack('<I', struct.pack('<f', c))[0]
    a(f's_mov_b32 s56, {cbits:#x}')
    a('v_mul_f32 v20, s56, v16')
    a('v_mov_b32 v21, 0')
    PF = 24
    for kb in range(32):
        for t in range(2):
            for h2 in range(2):
                i = (2*kb+t)*4 + 2*h2
                a(f'v_accvgpr_read_b32 v16, a{i}')
                a(f'v_accvgpr_read_b32 v17, a{i+1}')
                a('v_fma_f32 v16, v16, s56, -v20')
                a('v_fma_f32 v17, v17, s56, -v20')
                a('v_exp_f32 v16, v16')
                a('v_exp_f32 v17, v17')
                a('s_nop 0')
                a('v_add_f32 v21, v21, v16')
                a('v_add_f32 v21, v21, v17')
                a(f'v_cvt_pk_bf16_f32 v{PF+kb*4+2*t+h2}, v16, v17')
    a('ds_bpermute_b32 v17, v18, v21')
    a('s_waitcnt lgkmcnt(0)')
    a('v_add_f32 v21, v21, v17')
    a('ds_bpermute_b32 v17, v19, v21')
    a('s_waitcnt lgkmcnt(0)')
    a('v_add_f32 v21, v21, v17')
    a('v_rcp_f32 v21, v21')
    OA = 152
    FR = 216
    for i in range(64): a(f'v_mov_b32 v{OA+i}, 0')
    for kb in range(32):
        a(f's_add_u32 s55, s54, {kb*32*512}')
        for i in range(16):
            a(f's_mov_b32 m0, {i*1024}')
            a(f's_add_u32 s53, s55, {i*1024}')
            a(f'buffer_load_dwordx4 v8, s[36:39], s53 offen lds')
        a('s_waitcnt vmcnt(0)')
        for T in range(16):
            a(f'ds_read_b64_tr_b16 v[{FR}:{FR+1}], v13 offset:{T*32}')
            a(f'ds_read_b64_tr_b16 v[{FR+2}:{FR+3}], v13 offset:{T*32+16*512}')
            a('s_waitcnt lgkmcnt(0)')
            a(f'v_mfma_f32_16x16x32_bf16 v[{OA+4*T}:{OA+4*T+3}], v[{FR}:{FR+3}], v[{PF+4*kb}:{PF+4*kb+3}], v[{OA+4*T}:{OA+4*T+3}]')
            a('s_nop 7')
    a('s_nop 7')
    a('s_nop 7')
    OF = 24
    for i in range(64): a(f'v_mul_f32 v{OA+i}, v{OA+i}, v21')
    for s in range(8):
        for t in range(2):
            T = 2*s+t
            a(f'v_cvt_pk_bf16_f32 v{OF+4*s+2*t}, v{OA+4*T}, v{OA+4*T+1}')
            a(f'v_cvt_pk_bf16_f32 v{OF+4*s+2*t+1}, v{OA+4*T+2}, v{OA+4*T+3}')
    UA = 56
    for i in range(112): a(f'v_mov_b32 v{UA+i}, 0')
    a('s_mul_i32 s57, s24, %d' % (256*896))
    for s in range(8):
        a(f's_add_u32 s55, s57, {s*32*896}')
        for i in range(28):
            a(f's_mov_b32 m0, {i*1024}')
            a(f's_add_u32 s53, s55, {i*1024}')
            a(f'buffer_load_dwordx4 v8, s[44:47], s53 offen lds')
        a('s_waitcnt vmcnt(0)')
        for T in range(28):
            a(f'ds_read_b64_tr_b16 v[{FR}:{FR+1}], v14 offset:{T*32}')
            a(f'ds_read_b64_tr_b16 v[{FR+2}:{FR+3}], v14 offset:{T*32+16*896}')
            a('s_waitcnt lgkmcnt(0)')
            a(f'v_mfma_f32_16x16x32_bf16 v[{UA+4*T}:{UA+4*T+3}], v[{FR}:{FR+3}], v[{OF+4*s}:{OF+4*s+3}], v[{UA+4*T}:{UA+4*T+3}]')
            a('s_nop 7')
    a('s_nop 7')
    a('s_nop 7')
    a('s_movk_i32 s27, 1792')
    a('v_mul_lo_u32 v4, v3, s27')
    a('v_lshl_add_u32 v4, v2, 4, v4')
    a('s_mul_i32 s57, s24, %d' % (1280*1792))
    for T in range(28):
        a(f'buffer_store_dwordx4 v[{UA+4*T}:{UA+4*T+3}], v4, s[48:51], s57 offen offset:{T*64}')
    a('s_waitcnt vmcnt(0)')
    a.lab(f'L_{name}_done')
    a('s_endpgm')
    kdesc(a, name, 512, 256)

def reduce_v0(a, name='red0_kernel'):
    kstart(a, name)
    a('s_cmp_ge_u32 s2, 560')
    a(f's_cbranch_scc1 L_{name}_done')
    a('s_load_dwordx2 s[4:5], s[0:1], 40')
    a('s_load_dwordx2 s[6:7], s[0:1], 56')
    a('s_lshl_b32 s3, s2, 8')
    a('v_add_u32 v1, s3, v0')
    a('v_lshlrev_b32 v2, 4, v1')
    a('v_lshlrev_b32 v3, 3, v1')
    a('s_waitcnt lgkmcnt(0)')
    srd(a, 8, 4, 1280*448*2)
    srd(a, 12, 6, 16*1280*448*4)
    for h in range(16):
        a(f's_mov_b32 s16, {h*1280*1792}')
        a(f'buffer_load_dwordx4 v[{4+4*h}:{7+4*h}], v2, s[12:15], s16 offen')
    a('s_waitcnt vmcnt(0)')
    for h in range(1, 16):
        for i in range(4):
            a(f'v_add_f32 v{4+i}, v{4+i}, v{4+4*h+i}')
    a('v_cvt_pk_bf16_f32 v4, v4, v5')
    a('v_cvt_pk_bf16_f32 v5, v6, v7')
    a('buffer_store_dwordx2 v[4:5], v3, s[8:11], 0 offen')
    a('s_waitcnt vmcnt(0)')
    a.lab(f'L_{name}_done')
    a('s_endpgm')
    kdesc(a, name, 72, 72)

def probe(a, name, nt, share):
    kstart(a, name)
    a('s_cmp_ge_u32 s2, 256')
    a(f's_cbranch_scc1 L_{name}_done')
    a('s_load_dwordx4 s[4:7], s[0:1], 8')
    a('s_and_b32 s8, s2, 7')
    a('s_lshr_b32 s9, s2, 3')
    sh = {1:0, 2:1, 4:2}[share]
    a(f's_lshr_b32 s9, s9, {sh}')
    a(f's_lshl_b32 s8, s8, {5-sh}')
    a('s_add_u32 s8, s8, s9')
    rb = 128*1024*share
    a(f's_mul_i32 s8, s8, {rb}')
    a('v_lshrrev_b32 v1, 6, v0')
    a('s_nop 0')
    a('v_readfirstlane_b32 s10, v1')
    a('v_lshlrev_b32 v2, 4, v0')
    a('s_waitcnt lgkmcnt(0)')
    srd(a, 12, 4, 8*8*1024*256*2)
    srd(a, 16, 6, 8*8*1024*256*2)
    a('s_lshl_b32 s10, s10, 14')
    a('s_mov_b32 s11, 0')
    a.lab(f'L_{name}_loop')
    nts = ' nt' if nt else ''
    for i in range(8):
        a(f's_add_u32 m0, s10, {i*2048}')
        a(f's_add_u32 s20, s8, {i*8192}')
        a(f'buffer_load_dwordx4 v2, s[12:15], s20 offen lds{nts}')
        a(f's_add_u32 m0, s10, {i*2048+1024}')
        a('s_nop 0')
        a(f'buffer_load_dwordx4 v2, s[16:19], s20 offen lds{nts}')
        a('s_waitcnt vmcnt(14)')
    a('s_add_u32 s8, s8, 65536')
    a('s_add_u32 s11, s11, 65536')
    a(f's_cmp_lt_u32 s11, {rb}')
    a(f's_cbranch_scc1 L_{name}_loop')
    a('s_waitcnt vmcnt(0)')
    a.lab(f'L_{name}_done')
    a('s_endpgm')
    kdesc(a, name, 8, 8)

def build(path, probe_cfg=None):
    a = A()
    a.raw(HEADER.rstrip())
    if probe_cfg:
        a.raw('; @launch kernel=probe_kernel grid=(256,1,1) block=(512,1,1) lds=131072')
    a.raw('; @launch kernel=attn0_kernel grid=(1280,1,1) block=(64,1,1) lds=28672')
    a.raw('; @launch kernel=red0_kernel grid=(560,1,1) block=(256,1,1) lds=0')
    a.raw('.amdgcn_target "amdgcn-amd-amdhsa--gfx950"')
    if probe_cfg: probe(a, 'probe_kernel', *probe_cfg)
    attn_v0(a)
    reduce_v0(a)
    open(path, 'w').write(a.text())

if __name__ == '__main__':
    build('standalone__gqa_block_cached__near_ridge.s')
    for nt in (0, 1):
        for share in (1, 2, 4):
            build(f'probe_nt{nt}_s{share}.s', (nt, share))
```

```python
import re

def vr(a, n=1):
    return f'v{a}' if n == 1 else f'v[{a}:{a+n-1}]'

class Prog:
    def __init__(s):
        s.lines = []
        s.reset_state()
        s.count = {}
    def reset_state(s):
        s.n = 0
        s.valu_w = {}
        s.trans_w = {}
        s.mfma_w = {}
        s.mfma_c = {}
        s.store_r = {}
        s.dsq = []
        s.sgpr_vw = {}
        s.m0_w = -100
    def raw(s, t): s.lines.append(t)
    def label(s, t): s.lines.append(t + ':')
    def comment(s, t): s.lines.append('    ; ' + t)
    def _emit(s, t, states=1):
        s.lines.append('    ' + t)
        s.n += states
        op = t.split()[0]
        s.count[op] = s.count.get(op, 0) + 1
    def nop(s, k):
        while k > 0:
            c = min(k, 16)
            s._emit(f's_nop {c-1}', c)
            k -= c
    def fence(s):
        s.nop(10)
    def _need_ds(s, regs):
        last = -1
        for idx, d in enumerate(s.dsq):
            if d and (d & regs): last = idx
        if last >= 0:
            n_after = len(s.dsq) - 1 - last
            s.wait_lgkm(n_after)
    def wait_lgkm(s, n):
        n = min(n, 15)
        if len(s.dsq) <= n: return
        s._emit(f's_waitcnt lgkmcnt({n})')
        s.dsq = s.dsq[len(s.dsq)-n:] if n > 0 else []
    def wait_regs(s, regs):
        s._need_ds(set(regs))
    def wait_vm(s, n):
        s._emit(f's_waitcnt vmcnt({n})')
    def _haz(s, kind, R, W, Cregs=None, Dtuple=None, sR=()):
        need = 0
        def req(t, k):
            nonlocal need
            need = max(need, t + k + 1 - (s.n + 1) + 0) if False else max(need, k - (s.n - t - 1))
        for r in R:
            if kind == 'mfma':
                if r in s.valu_w: req(s.valu_w[r], 2)
                if r in s.mfma_w:
                    t, tup = s.mfma_w[r]
                    if Cregs and r in Cregs:
                        if tup != Dtuple: req(t, 6)
                    else:
                        req(t, 8)
            else:
                if r in s.mfma_w: req(s.mfma_w[r][0], 8)
                if kind == 'valu' and r in s.trans_w: req(s.trans_w[r], 1)
                if kind == 'perm' and r in s.valu_w: req(s.valu_w[r], 2)
                if kind == 'rfl' and r in s.valu_w: req(s.valu_w[r], 1)
        for r in W:
            if kind != 'mfma':
                if r in s.mfma_w: req(s.mfma_w[r][0], 8)
                if r in s.mfma_c: req(s.mfma_c[r], 3)
                if r in s.store_r: req(s.store_r[r], 2)
            else:
                if r in s.mfma_w and s.mfma_w[r][1] != Dtuple: req(s.mfma_w[r][0], 8)
                if r in s.store_r: req(s.store_r[r], 2)
        for sr in sR:
            if sr in s.sgpr_vw:
                req(s.sgpr_vw[sr], 5 if kind in ('vmem',) else 2)
        if need > 0: s.nop(need)
    @staticmethod
    def _rng(a, n): return set(range(a, a+n))
    def mfma(s, d, a, b, c=None):
        D = s._rng(d, 4); A = s._rng(a, 4); B = s._rng(b, 4)
        C = D if c is None else set()
        s._need_ds(A | B | D)
        s._haz('mfma', A | B | C, D, Cregs=C, Dtuple=(d, 4))
        cs = vr(d, 4) if c is None else '0'
        t = s.n
        s._emit(f'v_mfma_f32_16x16x32_bf16 {vr(d,4)}, {vr(a,4)}, {vr(b,4)}, {cs}')
        for r in D:
            s.mfma_w[r] = (t, (d, 4)); s.valu_w.pop(r, None); s.trans_w.pop(r, None)
        for r in C: s.mfma_c[r] = t
    def valu(s, text, W, R, kind='valu', sR=(), sW=()):
        W = set(W); R = set(R)
        s._need_ds(W | R)
        s._haz('valu' if kind in ('valu',) else kind, R, W, sR=sR)
        t = s.n
        s._emit(text)
        for r in W:
            s.valu_w[r] = t; s.mfma_w.pop(r, None)
            if kind == 'trans': s.trans_w[r] = t
            else: s.trans_w.pop(r, None)
        for x in sW: s.sgpr_vw[x] = t
    def salu(s, text, m0=False):
        t = s.n
        s._emit(text)
        if m0: s.m0_w = t
    def ds_read(s, text, d, n, addr):
        D = s._rng(d, n)
        s._need_ds(D | {addr})
        s._haz('ds', {addr}, D)
        s._emit(text)
        s.dsq.append(D)
        for r in D:
            s.valu_w.pop(r, None); s.mfma_w.pop(r, None); s.trans_w.pop(r, None)
    def ds_write(s, text, src, n, addr):
        S = s._rng(src, n)
        s._need_ds(S | {addr})
        s._haz('ds', S | {addr}, set())
        s._emit(text)
        s.dsq.append(None)
    def rd128(s, d, addr, off): s.ds_read(f'ds_read_b128 {vr(d,4)}, v{addr} offset:{off}', d, 4, addr)
    def rdtr(s, d, addr, off): s.ds_read(f'ds_read_b64_tr_b16 {vr(d,2)}, v{addr} offset:{off}', d, 2, addr)
    def rd32(s, d, addr, off): s.ds_read(f'ds_read_b32 v{d}, v{addr} offset:{off}', d, 1, addr)
    def wr128(s, addr, src, off): s.ds_write(f'ds_write_b128 v{addr}, {vr(src,4)} offset:{off}', src, 4, addr)
    def wr64(s, addr, src, off): s.ds_write(f'ds_write_b64 v{addr}, {vr(src,2)} offset:{off}', src, 2, addr)
    def wr32(s, addr, src, off): s.ds_write(f'ds_write_b32 v{addr}, v{src} offset:{off}', src, 1, addr)
    def dma(s, voff, srd, soff, off, pol=''):
        s._need_ds({voff})
        s._haz('vmem', {voff}, set())
        if s.n - s.m0_w - 1 < 1: s.nop(1)
        o = f' offset:{off}' if off else ''
        s._emit(f'buffer_load_dwordx4 v{voff}, s[{srd}:{srd+3}], {soff} offen{o}{pol} lds')
    def vload(s, text, W, R):
        W = set(W); R = set(R)
        s._need_ds(W | R)
        s._haz('vmem', R, W)
        s._emit(text)
        for r in W:
            s.valu_w.pop(r, None); s.mfma_w.pop(r, None); s.trans_w.pop(r, None)
    def vstore(s, text, R):
        R = set(R)
        s._need_ds(R)
        s._haz('vmem', R, set())
        t = s.n
        s._emit(text)
        for r in R: s.store_r[r] = t
    def barrier(s): s._emit('s_barrier')
    def text(s): return '\n'.join(s.lines) + '\n'

def kstart(p, name):
    p.raw('.text'); p.raw(f'.globl {name}'); p.raw('.p2align 8'); p.raw(f'.type {name},@function'); p.label(name)
    p.reset_state()

def kdesc(p, name, vgpr, accum, sgpr=102):
    for t in ['.section .rodata,"a"', '.p2align 6', f'.amdhsa_kernel {name}', f'  .amdhsa_next_free_vgpr {vgpr}',
              f'  .amdhsa_next_free_sgpr {sgpr}', f'  .amdhsa_accum_offset {accum}', '  .amdhsa_group_segment_fixed_size 0',
              '  .amdhsa_kernarg_size 64', '  .amdhsa_user_sgpr_count 2', '  .amdhsa_user_sgpr_kernarg_segment_ptr 1',
              '  .amdhsa_system_sgpr_workgroup_id_x 1', '.end_amdhsa_kernel', '.text']:
        p.raw(t)

def interleave(mf, fill):
    out = []
    nm = len(mf); nf = len(fill)
    fi = 0
    for k in range(nm):
        out.append(mf[k])
        target = ((k + 1) * nf + nm - 1) // nm
        while fi < nf and fi < target and fill[fi][0] <= k:
            out.append(fill[fi][1]); fi += 1
    while fi < nf:
        out.append(fill[fi][1]); fi += 1
    return out
```

```python
import math, struct, sys
from asmlib import *

HEADER = open('standalone__gqa_block_cached__near_ridge.s.ref').read().split('; Override launch')[0]

def fbits(x): return struct.unpack('<I', struct.pack('<f', x))[0]

SLOT = 32768
XB = 131072
ST = XB + 30720
FLAG = ST + 1280
LDS_BYTES = 163840
sX, sK, sV, sWQ, sWO, sWS = 20, 24, 28, 32, 36, 40
sW, sJ, sI, sC = 44, 45, 46, 47
sOFFQ = 48
sM0A, sM0D, sMODE, sC0 = 52, 53, 54, 55
sT0, sT1, sT2, sT3 = 56, 57, 58, 59
sCH = 60
sPAIR = 61
sU = 62
sJH = 63
vL = 0
vM0C, vLS, vMX = 1, 4, 7
vTR = 10
vKR = 14
vLIN0, vLIN1 = 16, 17
vPW = 18
vT0, vT1, vJUNK = 21, 22, 23
QREG, PREG, TREG, FREG = 24, 120, 216, 228
NA = 7
vDK, vDV, vDWQ, vDWO = TREG+8, TREG+9, TREG+10, TREG+11
vDX, vXR = PREG+60, PREG+61
THRESH = 24.0

SEQ = [(0,0),(1,0),(0,1),(0,2),(0,3),(1,1),(1,2),(1,3),(2,0),(3,0),(2,1),(2,2),(2,3),(3,1),(3,2),(3,3)]
NA_, NB_, NC_, ND_ = 7, 16, 16, 8
B0, C0_, D0, NEND = 7, 23, 39, 47

class Cfg:
    kv_pol = ''
    w_pol = ''
    st_pol = ''
    seq = SEQ
    prio = True
    warm = True

class Wave:
    def __init__(s, p, i, cfg):
        s.p = p; s.i = i; s.cfg = cfg
        s.NRT = 3 if i == 0 else 2
        s.RT0 = 0 if i == 0 else 3
        s.vm = []
        s.nbar = 0
        s.hi = {'tr': 0, 'kr': 0, 'wo': 0}
    def bar(s):
        s.p.barrier(); s.nbar += 1
    def vm_issue(s, tag): s.vm.append(tag)
    def vm_wait(s, tag, slack=0):
        idx = max([k for k, t in enumerate(s.vm) if t == tag], default=-1)
        if idx < 0: return
        n = len(s.vm) - 1 - idx - slack
        s.p.wait_vm(max(n, 0))
    def toggle(s, which, regs, want):
        if s.hi[which] != want:
            for r in regs:
                s.p.valu(f'v_xor_b32 v{r}, 0x10000, v{r}', [r], [r])
            s.hi[which] = want
    def dma_thunks(s, n, part=None):
        p = s.p; cfg = s.cfg
        th = []
        base = (n % 4) * SLOT
        if n >= NEND: return th
        def piece(voff, srd, soff, q, m0s, m0imm, pol, tag):
            def f():
                p.salu(f's_add_u32 m0, s{m0s}, {m0imm}', m0=True)
                p.dma(voff, srd, f's{soff}', q*128, pol)
                s.vm_issue(tag)
            return f
        if n < B0:
            def pre():
                p.salu(f's_lshl_b32 s{sT0}, s{sCH}, 19')
                p.salu(f's_add_u32 s{sT1}, s{sT0}, 262144')
                p.salu(f's_add_u32 s{sCH}, s{sCH}, 1')
                p.salu(f's_cmp_eq_u32 s{sCH}, 7')
                p.salu(f's_cselect_b32 s{sCH}, 0, s{sCH}')
            th.append(pre)
            for ks in range(2):
                for q in range(4):
                    th.append(piece(vDWQ, sWQ, sT0+ks, q, sM0A, base + ks*16384 + q*896, cfg.w_pol, n))
        elif n < C0_:
            t, d = cfg.seq[n-B0]
            for ks in range(2):
                if part is not None and ks != part: continue
                th.append(lambda ks=ks: p.salu(f's_add_u32 s{sT0+ks}, s{sOFFQ+d}, {t*131072 + ks*16384}'))
                for q in range(4):
                    th.append(piece(vDK, sK, sT0+ks, q, sM0A, base + ks*16384 + q*896, cfg.kv_pol, n))
        elif n < D0:
            tt = n - C0_; pr, hh = tt >> 1, tt & 1
            (ta, da), (tb, db) = cfg.seq[2*pr], cfg.seq[2*pr+1]
            if hh == 0:
                def pre():
                    p.salu(f's_add_u32 s{sT2}, s{sOFFQ+da}, {ta*131072}')
                    p.salu(f's_add_u32 s{sT3}, s{sOFFQ+db}, {tb*131072}')
                    p.salu(f's_cmp_eq_u32 s{sJH}, 0')
                    p.salu(f's_cselect_b32 s{sPAIR}, s{sT2}, s{sT3}')
                th.append(pre)
            for ks in range(2):
                th.append(lambda ks=ks: p.salu(f's_add_u32 s{sT0+ks}, s{sPAIR}, {(2*hh+ks)*8192}'))
                for q in range(4):
                    th.append(piece(vDV, sV, sT0+ks, q, sM0A, base + ks*16384 + q*896, cfg.kv_pol, n))
        else:
            sp = n - D0
            th.append(lambda: p.salu(f's_mov_b32 s{sT0}, {sp*32*896}'))
            for q in range(7):
                th.append(piece(vDWO, sWO, sT0, q, sM0D, base + q*896, cfg.w_pol, n))
        return th
    def xdma_thunks(s, m):
        p = s.p; cfg = s.cfg
        if m >= 7: return []
        def f():
            buf = XB + (m % 3)*10240
            p.salu(f's_lshl_b32 s{sT0}, s{sCH}, 7')
            p.salu(f's_add_u32 s{sT1}, s{sT0}, {32*896}')
            p.salu(f's_add_u32 s{sT2}, s{sT0}, {64*896}')
            p.salu(f's_add_u32 s{sCH}, s{sCH}, 1')
            p.salu(f's_cmp_eq_u32 s{sCH}, 7')
            p.salu(f's_cselect_b32 s{sCH}, 0, s{sCH}')
            lab = f'L_x3_{m}'
            p.salu(f's_cmp_lg_u32 s{sJH}, 0')
            p.salu(f's_cbranch_scc1 {lab}')
            p.salu(f's_add_u32 m0, s{sM0A}, {buf + 8*1024}', m0=True)
            p.dma(vDX, sX, f's{sT2}', 0, cfg.w_pol)
            p.label(lab)
            for r in range(2):
                p.salu(f's_add_u32 m0, s{sM0A}, {buf + r*4096}', m0=True)
                p.dma(vDX, sX, f's{sT0+r}', 0, cfg.w_pol)
                s.vm_issue(('x', m))
        return [f]
    def afrag_read(s, n, k, buf):
        p = s.p
        d = FREG + 4*buf
        base = (n % 4) * SLOT
        hi, lo = base >> 16, base & 0xffff
        if n < B0 or (C0_ <= n < D0):
            dt, ks = k >> 1, k & 1
            s.toggle('tr', range(vTR, vTR+4), hi)
            p.rdtr(d, vTR+dt, lo + ks*16384)
            p.rdtr(d+2, vTR+dt, lo + ks*16384 + 8192)
        elif n < C0_:
            s.toggle('kr', range(vKR, vKR+2), hi)
            p.rd128(d, vKR + (k & 1), lo + (k >> 1)*1024)
        else:
            s.toggle('wo', [vKR], hi)
            p.rdtr(d, vKR, lo + k*1024)
            p.rdtr(d+2, vKR, lo + k*1024 + 14336)
    def nfr(s, n): return 7 if n >= D0 else 8
    def fidx(s, n, k):
        return (n*8 + k) if n < D0 else (D0*8 + (n-D0)*7 + k)
    def frag_of(s, f):
        if f < D0*8: return f // 8, f % 8
        g = f - D0*8
        return D0 + g // 7, g % 7
    def qf(s, ss, rt): return QREG + (ss*s.NRT + rt)*4
    def pq(s, pr, rt): return PREG + (pr*s.NRT + rt)*4
    def sacc(s, ks_, rt): return s.pq(ks_ >> 1, rt) if ks_ % 2 == 0 else TREG + 4*rt
    def bbuf(s, n, ks, rt): return QREG + (n % 2)*24 + (ks*s.NRT + rt)*4 if n < B0 else QREG + ((n-C0_) % 2)*24 + (ks*s.NRT + rt)*4
    def aacc(s, dt, rt): return PREG + (dt*s.NRT + rt)*4
    def oacc(s, dt, rt): return QREG + 48 + (dt*s.NRT + rt)*4
    def uacc(s, q, rt): return PREG + (q*s.NRT + rt)*4
    def mfmas(s, n):
        p = s.p; out = []
        for k in range(s.nfr(n)):
            a = FREG + 4*(s.fidx(n, k) % NA)
            for rt in range(s.NRT):
                if n < B0:
                    dt, ks = k >> 1, k & 1
                    first = (n == 0 and ks == 0)
                    out.append((k, lambda a=a, dt=dt, ks=ks, rt=rt, first=first: p.mfma(s.aacc(dt, rt), a, s.bbuf(n, ks, rt), 0 if first else None)))
                elif n < C0_:
                    out.append((k, lambda a=a, k=k, rt=rt: p.mfma(s.sacc(n-B0, rt), a, s.qf(k, rt), 0 if k == 0 else None)))
                elif n < D0:
                    dt, ks = k >> 1, k & 1
                    first = (n == C0_ and ks == 0)
                    out.append((k, lambda a=a, dt=dt, ks=ks, rt=rt, first=first: p.mfma(s.oacc(dt, rt), a, s.bbuf(n, ks, rt), 0 if first else None)))
                else:
                    out.append((k, lambda a=a, k=k, rt=rt: p.mfma(s.uacc(k, rt), a, s.qf(n-D0, rt), 0 if n == D0 else None)))
        return out
    def bfrag_thunks(s, n):
        p = s.p; th = []
        if n < B0:
            for ks in range(2):
                for rt in range(s.NRT):
                    th.append(lambda ks=ks, rt=rt: p.rd128(s.bbuf(n, ks, rt), vXR+ks, (n % 3)*10240 + (s.RT0+rt)*2048))
        elif C0_ <= n < D0:
            t = n - C0_
            for ks in range(2):
                for rt in range(s.NRT):
                    th.append(lambda ks=ks, rt=rt: p.rd128(s.bbuf(n, ks, rt), vLIN1, XB - 98304 + (t % 3)*10240 + (ks*5 + s.RT0 + rt)*1024))
        return th
    def bregs(s, n):
        r = set()
        if n < B0 or C0_ <= n < D0:
            for ks in range(2):
                for rt in range(s.NRT):
                    b = s.bbuf(n, ks, rt); r |= set(range(b, b+4))
        return r
    def softmax_thunks(s, ks_):
        p = s.p; th = []
        for rt in range(s.NRT):
            a = s.sacc(ks_, rt); q = s.pq(ks_ >> 1, rt)
            m, l, mx = vM0C+rt, vLS+rt, vMX+rt
            for r in range(4):
                th.append(lambda r=r, a=a, m=m: p.valu(f'v_fma_f32 v{a+r}, v{a+r}, s{sC}, -v{m}', [a+r], [a+r, m]))
            th.append(lambda a=a, mx=mx: p.valu(f'v_max3_f32 v{mx}, v{mx}, v{a}, v{a+1}', [mx], [mx, a, a+1]))
            th.append(lambda a=a, mx=mx: p.valu(f'v_max3_f32 v{mx}, v{mx}, v{a+2}, v{a+3}', [mx], [mx, a+2, a+3]))
            for r in range(4):
                th.append(lambda r=r, a=a: p.valu(f'v_exp_f32 v{a+r}, v{a+r}', [a+r], [a+r], kind='trans'))
            for r in range(4):
                th.append(lambda r=r, a=a, l=l: p.valu(f'v_add_f32 v{l}, v{l}, v{a+r}', [l], [l, a+r]))
            d0 = q + 2*(ks_ & 1)
            th.append(lambda a=a, d0=d0: p.valu(f'v_cvt_pk_bf16_f32 v{d0}, v{a}, v{a+1}', [d0], [a, a+1]))
            th.append(lambda a=a, d0=d0: p.valu(f'v_cvt_pk_bf16_f32 v{d0+1}, v{a+2}, v{a+3}', [d0+1], [a+2, a+3]))
        return th
    def greduce(s, x, t, op):
        p = s.p
        for sw in ('v_permlane32_swap_b32', 'v_permlane16_swap_b32'):
            p.valu(f'v_mov_b32 v{t}, v{x}', [t], [x])
            p.valu(f'{sw} v{x}, v{t}', [x, t], [x, t], kind='perm')
            p.valu(f'{op} v{x}, v{x}, v{t}', [x], [x, t])
    def stat_addr(s, d, write):
        p = s.p
        p.valu(f'v_and_b32 v{d}, 15, v{vL}', [d], [vL])
        p.valu(f'v_lshlrev_b32 v{d}, 4, v{d}', [d], [d])
        if write:
            p.salu(f's_lshl_b32 s{sT3}, s{sJ}, 2')
            p.salu(f's_add_u32 s{sT3}, s{sT3}, {ST}')
            p.valu(f'v_add_u32 v{d}, s{sT3}, v{d}', [d], [d])
        else:
            p.valu(f'v_add_u32 v{d}, {ST}, v{d}', [d], [d])
    def run(s, n, extra, pre=(), post=()):
        p = s.p
        mf = s.mfmas(n)
        nm = len(mf)
        fill = list(extra)
        for k in range(s.nfr(n)):
            f = s.fidx(n, k) + NA
            n2, k2 = s.frag_of(f)
            if n2 < NEND:
                pos = (k+1)*s.NRT - 1 + 0.5
                fill.append((pos, lambda n2=n2, k2=k2, f=f: s.afrag_read(n2, k2, f % NA)))
        fill.sort(key=lambda x: x[0])
        for t in pre: t()
        fi = 0
        while fi < len(fill) and fill[fi][0] < 0:
            fill[fi][1](); fi += 1
        for k in range(nm):
            mf[k][1]()
            while fi < len(fill) and fill[fi][0] < k+1:
                fill[fi][1](); fi += 1
        while fi < len(fill):
            fill[fi][1](); fi += 1
        for t in post: t()
    def spread(s, th, lo, hi):
        n = len(th)
        return [(lo + (hi-lo)*(k+0.5)/n, t) for k, t in enumerate(th)] if n else []
    def end_interval(s, n):
        p = s.p
        p.wait_regs(s.bregs(n+1))
        if any(d is None for d in p.dsq):
            last = max(k for k, d in enumerate(p.dsq) if d is None)
            p.wait_lgkm(len(p.dsq) - 1 - last)
        if s.i == 1: s.vm_wait(n+2)
        else: s.vm_wait(('x', n+2))
        s.bar()

    def program(s):
        p = s.p; i = s.i; NRT = s.NRT; cfg = s.cfg
        V = p.valu
        p.label(f'L_restart{i}')
        p.reset_state()
        s.hi = {'tr': 0, 'kr': 0, 'wo': 0}
        t0, t1 = vT0, vT1
        t2, t3 = vPW, vPW+1
        V(f'v_lshrrev_b32 v{t0}, 3, v{vL}', [t0], [vL])
        V(f'v_and_b32 v{t1}, 7, v{vL}', [t1], [vL])
        V(f'v_xor_b32 v{t1}, v{t1}, v{t0}', [t1], [t1, t0])
        V(f'v_lshlrev_b32 v{t1}, 4, v{t1}', [t1], [t1])
        p.salu(f's_mov_b32 s{sCH}, s{sC0}')
        if i == 1:
            V(f'v_and_b32 v{t2}, 3, v{t0}', [t2], [t0])
            V(f'v_lshrrev_b32 v{t3}, 2, v{t0}', [t3], [t0])
            V(f'v_lshl_add_u32 v{t2}, v{t3}, 3, v{t2}', [t2], [t2, t3])
            p.salu(f's_and_b32 s{sT0}, s{sJ}, 1')
            p.salu(f's_lshl_b32 s{sT0}, s{sT0}, 4')
            p.salu(f's_lshl_b32 s{sT1}, s{sJH}, 2')
            p.salu(f's_add_u32 s{sT0}, s{sT0}, s{sT1}')
            V(f'v_add_u32 v{t2}, s{sT0}, v{t2}', [t2], [t2])
            V(f'v_lshl_add_u32 v{vDWQ}, v{t2}, 13, v{t1}', [vDWQ], [t2, t1])
            for n in range(3):
                for t in s.dma_thunks(n): t()
            V(f'v_lshl_add_u32 v{t2}, v{t0}, 9, v{t1}', [t2], [t0, t1])
            V(f'v_add_u32 v{vDK}, s{sM0A}, v{t2}', [vDK], [t2])
            p.salu(f's_and_b32 s{sT0}, s{sJ}, 1')
            p.salu(f's_lshl_b32 s{sT0}, s{sT0}, 12')
            V(f'v_add_u32 v{vDV}, s{sT0}, v{t2}', [vDV], [t2])
            p.salu(f's_lshl_b32 s{sT0}, s{sJ}, 3')
            V(f'v_add_u32 v{t2}, s{sT0}, v{t0}', [t2], [t0])
            V(f'v_mul_u32_u24 v{t2}, 896, v{t2}', [t2], [t2])
            V(f'v_add_u32 v{vDWO}, v{t2}, v{t1}', [vDWO], [t2, t1])
        else:
            p.salu(f's_lshl_b32 s{sT0}, s{sJ}, 3')
            V(f'v_add_u32 v{t2}, s{sT0}, v{t0}', [t2], [t0])
            V(f'v_mul_u32_u24 v{t2}, 896, v{t2}', [t2], [t2])
            V(f'v_add_u32 v{vDX}, v{t2}, v{t1}', [vDX], [t2, t1])
            p.salu(f's_lshr_b32 s{sM0A}, s{sM0A}, 2')
            for m in range(3):
                for t in s.xdma_thunks(m): t()
        V(f'v_bfe_u32 v{t0}, v{vL}, 2, 3', [t0], [vL])
        V(f'v_bfe_u32 v{t1}, v{vL}, 1, 1', [t1], [vL])
        V(f'v_lshrrev_b32 v{t2}, 5, v{vL}', [t2], [vL])
        V(f'v_lshlrev_b32 v{t2}, 12, v{t2}', [t2], [t2])
        V(f'v_lshl_add_u32 v{t2}, v{t0}, 7, v{t2}', [t2], [t0, t2])
        V(f'v_and_b32 v{t3}, 1, v{vL}', [t3], [vL])
        V(f'v_lshl_add_u32 v{t2}, v{t3}, 3, v{t2}', [t2], [t3, t2])
        p.salu(f's_lshl_b32 s{sT0}, s{sJ}, 10')
        V(f'v_add_u32 v{t2}, s{sT0}, v{t2}', [t2], [t2])
        for tau in range(4):
            V(f'v_or_b32 v{t3}, {2*tau}, v{t1}', [t3], [t1])
            V(f'v_xor_b32 v{t3}, v{t3}, v{t0}', [t3], [t3, t0])
            V(f'v_lshl_add_u32 v{vTR+tau}, v{t3}, 4, v{t2}', [vTR+tau], [t3, t2])
        V(f'v_and_b32 v{t0}, 7, v{vL}', [t0], [vL])
        V(f'v_lshrrev_b32 v{t1}, 4, v{vL}', [t1], [vL])
        V(f'v_bfe_u32 v{t2}, v{vL}, 3, 1', [t2], [vL])
        for e in range(2):
            V(f'v_or_b32 v{t3}, {4*e}, v{t1}', [t3], [t1])
            V(f'v_xor_b32 v{t3}, v{t3}, v{t0}', [t3], [t3, t0])
            V(f'v_lshlrev_b32 v{t3}, 4, v{t3}', [t3], [t3])
            V(f'v_lshl_add_u32 v{t3}, v{t0}, 7, v{t3}', [t3], [t0, t3])
            V(f'v_lshl_add_u32 v{vXR+e}, v{t2}, 10, v{t3}', [vXR+e], [t2, t3])
            V(f'v_add_u32 v{vXR+e}, {XB}, v{vXR+e}', [vXR+e], [vXR+e])
            V(f'v_lshl_add_u32 v{vKR+e}, v{t2}, 12, v{t3}', [vKR+e], [t2, t3])
            p.salu(f's_lshl_b32 s{sT0}, s{sJ}, 13')
            V(f'v_add_u32 v{vKR+e}, s{sT0}, v{vKR+e}', [vKR+e], [vKR+e])
        V(f'v_lshlrev_b32 v{vLIN0}, 4, v{vL}', [vLIN0], [vL])
        V(f'v_add_u32 v{vLIN1}, 98304, v{vLIN0}', [vLIN1], [vLIN0])
        V(f'v_mov_b32 v{t0}, 0', [t0], [])
        V(f'v_mov_b32 v{t1}, {FLAG}', [t1], [])
        p.wr32(t1, t0, 0)
        for rt in range(NRT):
            V(f'v_mov_b32 v{vLS+rt}, 0', [vLS+rt], [])
            V(f'v_mov_b32 v{vMX+rt}, 0xff800000', [vMX+rt], [])
        p.wait_lgkm(0)
        if i == 1: s.vm_wait(0)
        else: s.vm_wait(('x', 0))
        s.bar()
        for t in s.bfrag_thunks(0): t()
        for f in range(NA): s.afrag_read(0, f, f)
        s.end_interval(-1)

        for n in range(NEND):
            nm = s.nfr(n)*NRT
            ex = []; pre = []; post = []
            if i == 1:
                if n + 3 == 10: th = s.dma_thunks(10, part=0)
                elif n + 3 == 11: th = s.dma_thunks(10, part=1) + s.dma_thunks(11)
                else: th = s.dma_thunks(n+3)
                ex += s.spread(th, -0.5, nm*0.75)
            else:
                ex += s.spread(s.xdma_thunks(n+3), 0, 1)
            if n + 1 == C0_:
                ex += s.spread(s.bfrag_thunks(n+1), 2*NRT+0.2, 4*NRT)
                if i == 1:
                    ex = [e for e in ex]
            else:
                ex += s.spread(s.bfrag_thunks(n+1), 0, nm*0.5)
            if n == B0 - 1:
                def qaddr():
                    V(f'v_lshrrev_b32 v{vT0}, 5, v{vL}', [vT0], [vL])
                    V(f'v_lshlrev_b32 v{vT0}, 8, v{vT0}', [vT0], [vT0])
                    V(f'v_and_b32 v{vT1}, 15, v{vL}', [vT1], [vL])
                    V(f'v_lshl_add_u32 v{vT0}, v{vT1}, 4, v{vT0}', [vT0], [vT1, vT0])
                    V(f'v_bfe_u32 v{vT1}, v{vL}, 4, 1', [vT1], [vL])
                    V(f'v_lshl_add_u32 v{vT0}, v{vT1}, 3, v{vT0}', [vT0], [vT1, vT0])
                    p.salu(f's_lshl_b32 s{sT3}, s{sJ}, 11')
                    p.salu(f's_add_u32 s{sT3}, s{sT3}, {XB if i == 0 else 81920}')
                    V(f'v_add_u32 v{vT0}, s{sT3}, v{vT0}', [vT0], [vT0])
                ex.append((0.5, qaddr))
                wr = []
                for dt in range(4):
                    for rt in range(NRT):
                        a = s.aacc(dt, rt)
                        def cv(a=a):
                            V(f'v_cvt_pk_bf16_f32 v{a}, v{a}, v{a+1}', [a], [a, a+1])
                            V(f'v_cvt_pk_bf16_f32 v{a+1}, v{a+2}, v{a+3}', [a+1], [a+2, a+3])
                        def w(a=a, dt=dt, rt=rt):
                            p.wr64(vT0, a, rt*8192 + (dt >> 1)*1024 + (dt & 1)*512)
                        pos = (2*dt+2)*NRT + 3 + rt
                        ex.append((pos, cv))
                        if i == 0: ex.append((pos + 0.1, w))
                        else: wr.append(w)
                post.append(lambda: s.bar())
                post += wr
            if n == B0:
                def qa():
                    V(f'v_add_u32 v{vT0}, {XB if i == 0 else 81920}, v{vLIN0}', [vT0], [vLIN0])
                pre.append(qa)
                th = []
                for ss in range(8):
                    for rt in range(NRT):
                        th.append(lambda ss=ss, rt=rt: p.rd128(s.qf(ss, rt), vT0, rt*8192 + ss*1024))
                nup = 4*NRT
                pre += th[:nup]
                for k, t in enumerate(th[nup:]): ex.append((k + 0.3, t))
                def tmax():
                    lab = f'L_skipmax{i}'
                    s.stat_addr(vT1, True)
                    for rt in range(NRT):
                        a = s.sacc(0, rt); x = vPW + rt
                        V(f'v_max3_f32 v{x}, v{a}, v{a+1}, v{a+2}', [x], [a, a+1, a+2])
                        V(f'v_max_f32 v{x}, v{x}, v{a+3}', [x], [x, a+3])
                        s.greduce(x, vT0, 'v_max_f32')
                        p.wr32(vT1, x, (s.RT0+rt)*256)
                post.append(tmax)
            if n == B0 + 1:
                def m0get():
                    s.stat_addr(vT1, False)
                    for rt in range(NRT):
                        p.rd128(s.pq(7, rt), vT1, (s.RT0+rt)*256)
                    p.wait_lgkm(0)
                    p.salu(f's_cmp_lg_u32 s{sMODE}, 0')
                    p.salu(f's_cbranch_scc1 L_havem{i}')
                    for rt in range(NRT):
                        a = s.pq(7, rt); m = vM0C + rt
                        V(f'v_max3_f32 v{m}, v{a}, v{a+1}, v{a+2}', [m], [a, a+1, a+2])
                        V(f'v_max_f32 v{m}, v{m}, v{a+3}', [m], [m, a+3])
                        V(f'v_mul_f32 v{m}, s{sC}, v{m}', [m], [m])
                    p.label(f'L_havem{i}')
                ex.append((2.5, m0get))
            if B0 + 1 <= n <= C0_:
                lo = 3 if n == B0 + 1 else 0.6
                ex += s.spread(s.softmax_thunks(n - B0 - 1), lo, nm - 0.01)
            if n == B0 + 4 and i == 0 and cfg.warm:
                def warm():
                    p.salu(f's_mul_i32 s{sT0}, s{sU}, 112')
                    p.salu(f's_mul_i32 s{sT1}, s{sJ}, 28')
                    p.salu(f's_add_u32 s{sT0}, s{sT0}, s{sT1}')
                    V(f'v_add_u32 v{vT0}, s{sT0}, v{vL}', [vT0], [vL])
                    V(f'v_lshlrev_b32 v{vT0}, 7, v{vT0}', [vT0], [vT0])
                    V(f'v_cmp_gt_u32 vcc, 28, v{vL}', [], [vL])
                    V(f'v_mov_b32 v{vT1}, 0x70000000', [vT1], [])
                    p.nop(1)
                    V(f'v_cndmask_b32 v{vT0}, v{vT1}, v{vT0}, vcc', [vT0], [vT0, vT1])
                    p.vload(f'buffer_load_dword v{vJUNK}, v{vT0}, s[{sWO}:{sWO+3}], 0 offen', [vJUNK], [vT0])
                    s.vm_issue('warm')
                ex.append((5.5, warm))
            if n == C0_ - 3:
                def pwaddr():
                    p.salu(f's_and_b32 s{sT3}, s{sJ}, 1')
                    p.salu(f's_mul_i32 s{sT3}, s{sT3}, 5120')
                    p.salu(f's_add_u32 s{sT3}, s{sT3}, {XB}')
                    p.salu(f's_cmp_eq_u32 s{sJH}, 0')
                    for k in range(3):
                        p.salu(f's_cselect_b32 s{sT2}, {k*10240}, {((k+1) % 3)*10240}') if False else None
                    for k in range(3):
                        p.salu(f's_mov_b32 s{sT2}, {((k+1) % 3)*10240}')
                        p.salu(f's_cmp_eq_u32 s{sJH}, 0')
                        p.salu(f's_cselect_b32 s{sT2}, {k*10240}, s{sT2}')
                        p.salu(f's_add_u32 s{sT2}, s{sT2}, s{sT3}')
                        V(f'v_add_u32 v{vPW+k}, s{sT2}, v{vLIN0}', [vPW+k], [vLIN0])
                ex.append((nm - 1.5, pwaddr))
            t = n - C0_
            if -2 <= t <= 12 and t % 2 == 0:
                pr = t//2 + 1
                th = [(lambda rt=rt: p.wr128(vPW + (2*pr) % 3, s.pq(pr, rt), (s.RT0+rt)*1024)) for rt in range(NRT)]
                ex += s.spread(th, nm*0.5, nm*0.8)
            if n == C0_ + 1:
                def lsum():
                    s.stat_addr(vT1, True)
                    for rt in range(NRT):
                        s.greduce(vLS+rt, vT0, 'v_add_f32')
                        p.wr32(vT1, vLS+rt, (s.RT0+rt)*256)
                    if NRT == 3: V(f'v_max3_f32 v{vT0}, v{vMX}, v{vMX+1}, v{vMX+2}', [vT0], [vMX, vMX+1, vMX+2])
                    else: V(f'v_max_f32 v{vT0}, v{vMX}, v{vMX+1}', [vT0], [vMX, vMX+1])
                    V(f'v_cmp_nge_f32 vcc, {fbits(THRESH):#x}, v{vT0}', [], [vT0])
                    p.nop(5)
                    p.salu(f's_cbranch_vccz L_safe{i}')
                    V(f'v_mov_b32 v{vT0}, 1', [vT0], [])
                    V(f'v_mov_b32 v{vT1}, {FLAG}', [vT1], [])
                    p._emit(f'ds_write_b32 v{vT1}, v{vT0}')
                    p._emit('s_waitcnt lgkmcnt(0)')
                    p.label(f'L_safe{i}')
                ex.append((4.5, lsum))
            if n == C0_ + 3:
                def lget():
                    s.stat_addr(vT1, False)
                    for rt in range(NRT):
                        p.rd128(TREG + 4*rt, vT1, (s.RT0+rt)*256)
                ex.append((1.5, lget))
                def lfin():
                    for rt in range(NRT):
                        a = TREG + 4*rt; l = vLS + rt
                        V(f'v_add_f32 v{a}, v{a}, v{a+1}', [a], [a, a+1])
                        V(f'v_add_f32 v{a+2}, v{a+2}, v{a+3}', [a+2], [a+2, a+3])
                        V(f'v_add_f32 v{l}, v{a}, v{a+2}', [l], [a, a+2])
                        V(f'v_rcp_f32 v{l}, v{l}', [l], [l], kind='trans')
                ex.append((nm*0.6, lfin))
                def flagchk():
                    V(f'v_mov_b32 v{vT1}, {FLAG}', [vT1], [])
                    p.rd32(vT0, vT1, 0)
                    V(f'v_readfirstlane_b32 s{sT3}, v{vT0}', [], [vT0], kind='rfl')
                    p.nop(1)
                    p.salu(f's_andn2_b32 s{sT3}, s{sT3}, s{sMODE}')
                    p.salu(f's_cbranch_scc1 L_redo{i}')
                post.append(flagchk)
            if n == D0 - 2:
                def woaddr():
                    V(f'v_bfe_u32 v{vT0}, v{vL}, 2, 3', [vT0], [vL])
                    V(f'v_bfe_u32 v{vT1}, v{vL}, 1, 1', [vT1], [vL])
                    p.salu(f's_lshl_b32 s{sT3}, s{sJ}, 1')
                    V(f'v_or_b32 v{vT1}, s{sT3}, v{vT1}', [vT1], [vT1])
                    V(f'v_xor_b32 v{vT1}, v{vT1}, v{vT0}', [vT1], [vT1, vT0])
                    V(f'v_lshlrev_b32 v{vT1}, 4, v{vT1}', [vT1], [vT1])
                    V(f'v_lshl_add_u32 v{vT1}, v{vT0}, 7, v{vT1}', [vT1], [vT0, vT1])
                    V(f'v_and_b32 v{vT0}, 1, v{vL}', [vT0], [vL])
                    V(f'v_lshl_add_u32 v{vT1}, v{vT0}, 3, v{vT1}', [vT1], [vT0, vT1])
                    V(f'v_lshrrev_b32 v{vT0}, 5, v{vL}', [vT0], [vL])
                    V(f'v_mul_u32_u24 v{vT0}, 7168, v{vT0}', [vT0], [vT0])
                    V(f'v_add_u32 v{vKR}, v{vT0}, v{vT1}', [vKR], [vT0, vT1])
                ex.append((2.5, woaddr))
            if n == D0 - 1:
                def oaddr():
                    if i == 0:
                        p.salu(f's_lshl_b32 s{sT3}, s{sJ}, 11')
                        p.salu(f's_add_u32 s{sT3}, s{sT3}, {XB}')
                    else:
                        p.salu(f's_mov_b32 s{sT3}, {3*SLOT+28672}')
                        for jj, ad in ((1, 28672), (2, SLOT+28672), (3, XB+24576)):
                            p.salu(f's_cmp_eq_u32 s{sJ}, {jj}')
                            p.salu(f's_cselect_b32 s{sT3}, {ad}, s{sT3}')
                    V(f'v_add_u32 v{vT0}, s{sT3}, v{vLIN0}', [vT0], [vLIN0])
                ex.append((0.5, oaddr))
                for e in range(2):
                    for rt in range(NRT):
                        a0, a1 = s.oacc(2*e, rt), s.oacc(2*e+1, rt)
                        def nrm(a, d, rt=rt):
                            for r in range(4):
                                V(f'v_mul_f32 v{a+r}, v{a+r}, v{vLS+rt}', [a+r], [a+r, vLS+rt])
                            V(f'v_cvt_pk_bf16_f32 v{d}, v{a}, v{a+1}', [d], [a, a+1])
                            V(f'v_cvt_pk_bf16_f32 v{d+1}, v{a+2}, v{a+3}', [d+1], [a+2, a+3])
                        ex.append(((4*e+2)*NRT + 3 + rt, lambda a0=a0, nrm=nrm: nrm(a0, a0)))
                        def second(a0=a0, a1=a1, nrm=nrm, e=e, rt=rt):
                            nrm(a1, a0+2)
                            off = (rt*8192 + e*1024) if i == 0 else (e*2 + rt)*1024
                            p.wr128(vT0, a0, off)
                        ex.append(((4*e+4)*NRT + 3 + rt, second))
            if n == D0:
                th = []
                for ss in range(8):
                    for rt in range(NRT):
                        if i == 0:
                            th.append(lambda ss=ss, rt=rt: p.rd128(s.qf(ss, rt), vLIN1, XB - 98304 + rt*8192 + ss*1024))
                        else:
                            ad = [3*SLOT+28672, 28672, SLOT+28672, XB+24576][ss >> 1] + ((ss & 1)*2 + rt)*1024
                            if ad >= 98304: th.append(lambda ss=ss, rt=rt, ad=ad: p.rd128(s.qf(ss, rt), vLIN1, ad - 98304))
                            else: th.append(lambda ss=ss, rt=rt, ad=ad: p.rd128(s.qf(ss, rt), vLIN0, ad))
                pre += th[:NRT]
                ex += s.spread(th[NRT:], 0, nm*0.9)
            if n == NEND - 1:
                def fin():
                    p.salu(f's_mul_i32 s{sT0}, s{sJ}, {18*1024}')
                    if i == 1: p.salu(f's_add_u32 s{sT0}, s{sT0}, {11*1024}')
                    nt = NRT*7
                    for u in range((nt+1)//2):
                        regs = []
                        d = QREG + 4*u
                        for h2 in range(2):
                            tt = min(2*u + h2, nt-1)
                            rt, q = tt // 7, tt % 7
                            a = s.uacc(q, rt)
                            V(f'v_cvt_pk_bf16_f32 v{d+2*h2}, v{a}, v{a+1}', [d+2*h2], [a, a+1])
                            V(f'v_cvt_pk_bf16_f32 v{d+2*h2+1}, v{a+2}, v{a+3}', [d+2*h2+1], [a+2, a+3])
                        if u == 4 or u == 8:
                            p.salu(f's_add_u32 s{sT0}, s{sT0}, 4096')
                        p.vstore(f'buffer_store_dwordx4 {vr(d,4)}, v{vLIN0}, s[{sWS}:{sWS+3}], s{sT0} offen offset:{(u % 4)*1024}{cfg.st_pol}', list(range(d, d+4)) + [vLIN0])
                post.append(fin)
            s.run(n, ex, pre, post)
            if n < NEND - 1: s.end_interval(n)
        p._emit('s_endpgm')
        p.label(f'L_redo{i}')
        p.reset_state(); p.fence()
        p._emit('s_waitcnt vmcnt(0) lgkmcnt(0)')
        p.barrier()
        s.stat_addr(vT1, True)
        for rt in range(NRT):
            V(f'v_add_f32 v{vMX+rt}, v{vMX+rt}, v{vM0C+rt}', [vMX+rt], [vMX+rt, vM0C+rt])
            s.greduce(vMX+rt, vT0, 'v_max_f32')
            p.wr32(vT1, vMX+rt, (s.RT0+rt)*256)
        p.wait_lgkm(0)
        p.barrier()
        s.stat_addr(vT1, False)
        for rt in range(NRT):
            a = TREG + 4*rt if NRT == 3 else QREG + 4*rt; m = vM0C + rt
            p.rd128(a, vT1, (s.RT0+rt)*256)
            V(f'v_max3_f32 v{m}, v{a}, v{a+1}, v{a+2}', [m], [a, a+1, a+2])
            V(f'v_max_f32 v{m}, v{m}, v{a+3}', [m], [m, a+3])
        p.wait_lgkm(0)
        p.salu(f's_mov_b32 s{sMODE}, 1')
        p.salu(f's_lshl_b32 s{sM0A}, s{sJ}, 12')
        p.barrier()
        p.fence()
        p.salu(f's_branch L_restart{i}')

def srd_off(p, d, base, off_s, nbytes):
    p.salu(f's_add_u32 s{d}, s{base}, s{off_s}')
    p.salu(f's_addc_u32 s{d+1}, s{base+1}, 0')
    p.salu(f's_and_b32 s{d+1}, s{d+1}, 0xffff')
    p.salu(f's_mov_b32 s{d+2}, {nbytes}') if isinstance(nbytes, int) else p.salu(f's_mov_b32 s{d+2}, s{nbytes[0]}')
    p.salu(f's_mov_b32 s{d+3}, 0x00020000')

def attn_kernel(p, name, cfg):
    kstart(p, name)
    S = p.salu
    S('s_cmp_ge_u32 s2, 256')
    S(f's_cbranch_scc1 L_{name}_done')
    S('s_load_dwordx16 s[4:19], s[0:1], 0')
    p.valu('v_lshrrev_b32 v1, 6, v0', [1], [0])
    p.valu(f'v_readfirstlane_b32 s{sW}, v1', [], [1], kind='rfl')
    p.valu('v_and_b32 v0, 63, v0', [0], [0])
    S('s_and_b32 s64, s2, 7')
    S('s_lshr_b32 s65, s2, 3')
    S('s_lshr_b32 s66, s65, 2')
    S('s_and_b32 s67, s65, 3')
    S('s_lshr_b32 s68, s67, 1')
    S('s_and_b32 s69, s67, 1')
    S('s_lshl_b32 s70, s64, 1')
    S('s_add_u32 s70, s70, s68')
    S(f's_and_b32 s{sJ}, s{sW}, 3')
    S(f's_lshr_b32 s{sI}, s{sW}, 2')
    S(f's_lshr_b32 s{sJH}, s{sJ}, 1')
    S(f's_mov_b32 s{sC}, {fbits(math.log2(math.e)/16.0):#x}')
    for d in range(4):
        S(f's_add_u32 s71, s67, {d}')
        S('s_and_b32 s71, s71, 3')
        S(f's_lshl_b32 s{sOFFQ+d}, s71, 15')
    S(f's_lshl_b32 s{sM0A}, s{sJ}, 12')
    S(f's_mul_i32 s{sM0D}, s{sJ}, 7168')
    S(f's_mov_b32 s{sMODE}, 0')
    S(f's_lshl_b32 s{sU}, s66, 1')
    S(f's_add_u32 s{sU}, s{sU}, s69')
    S(f's_mul_i32 s71, s{sU}, 37')
    S('s_lshr_b32 s71, s71, 8')
    S('s_mul_i32 s71, s71, 7')
    S(f's_sub_u32 s{sC0}, s{sU}, s71')
    S('s_waitcnt lgkmcnt(0)')
    S(f's_mul_i32 s71, s{sU}, {80*896}')
    srd_off(p, sX, 4, 71, 80*896)
    S('s_lshl_b32 s71, s66, 3')
    S('s_add_u32 s71, s71, s64')
    S('s_lshl_b32 s71, s71, 19')
    srd_off(p, sK, 6, 71, 524288)
    srd_off(p, sV, 8, 71, 524288)
    S('s_lshl_b32 s71, s70, 9')
    S(f's_sub_u32 s72, {448*8192}, s71')
    srd_off(p, sWQ, 10, 71, (72,))
    S(f's_mul_i32 s71, s70, {256*896}')
    srd_off(p, sWO, 12, 71, 256*896)
    S('s_lshl_b32 s71, s70, 4')
    S(f's_add_u32 s71, s71, s{sU}')
    S(f's_mul_i32 s71, s71, {72*1024}')
    srd_off(p, sWS, 18, 71, 72*1024)
    S(f's_cmp_lg_u32 s{sI}, 0')
    S('s_cbranch_scc1 L_restart1')
    if cfg.prio: S('s_setprio 1')
    w0 = Wave(p, 0, cfg); w0.program()
    w1 = Wave(p, 1, cfg); w1.program()
    assert w0.nbar == w1.nbar, (w0.nbar, w1.nbar)
    p.label(f'L_{name}_done')
    p._emit('s_endpgm')
    kdesc(p, name, 256, 256)

def reduce_kernel(p, name):
    kstart(p, name)
    S = p.salu; V = p.valu
    S('s_cmp_ge_u32 s2, 1152')
    S(f's_cbranch_scc1 L_{name}_done')
    S('s_load_dwordx2 s[4:5], s[0:1], 40')
    S('s_load_dwordx2 s[6:7], s[0:1], 56')
    S('s_and_b32 s8, s2, 15')
    S('s_lshr_b32 s9, s2, 4')
    S('s_mul_i32 s10, s9, 57')
    S('s_lshr_b32 s10, s10, 10')
    S('s_mul_i32 s11, s10, 18')
    S('s_sub_u32 s11, s9, s11')
    V('v_lshlrev_b32 v1, 4, v0', [1], [0])
    S(f's_mul_i32 s12, s8, {72*1024}')
    S('s_lshl_b32 s13, s9, 10')
    S('s_add_u32 s12, s12, s13')
    S('s_waitcnt lgkmcnt(0)')
    S('s_mov_b32 s16, s6'); S('s_and_b32 s17, s7, 0xffff'); S(f's_mov_b32 s18, {256*72*1024}'); S('s_mov_b32 s19, 0x00020000')
    S('s_mov_b32 s20, s4'); S('s_and_b32 s21, s5, 0xffff'); S(f's_mov_b32 s22, {1280*448*2}'); S('s_mov_b32 s23, 0x00020000')
    for h in range(16):
        p.vload(f'buffer_load_dwordx4 v[{8+4*h}:{11+4*h}], v1, s[16:19], s12 offen', range(8+4*h, 12+4*h), [1])
        if h < 15: S(f's_add_u32 s12, s12, {16*72*1024}')
    S('s_lshl_b32 s24, s11, 1')
    S('s_cmp_ge_u32 s11, 11')
    S('s_cselect_b32 s25, 1, 0')
    S('s_sub_u32 s24, s24, s25')
    S('s_add_u32 s26, s24, 1')
    V('v_and_b32 v2, 15, v0', [2], [0])
    V('v_mul_u32_u24 v2, 896, v2', [2], [2])
    V('v_lshrrev_b32 v3, 4, v0', [3], [0])
    V('v_lshl_add_u32 v2, v3, 3, v2', [2], [3, 2])
    for k, sr in ((0, 24), (1, 26)):
        S(f's_mul_i32 s27, s{sr}, 37')
        S('s_lshr_b32 s27, s27, 8')
        S('s_mul_i32 s28, s27, 7')
        S(f's_sub_u32 s28, s{sr}, s28')
        S('s_lshl_b32 s27, s27, 4')
        S('s_mul_i32 s29, s8, 80')
        S('s_add_u32 s27, s27, s29')
        S('s_mul_i32 s27, s27, 896')
        S('s_lshl_b32 s28, s28, 7')
        S('s_add_u32 s27, s27, s28')
        S('s_lshl_b32 s28, s10, 5')
        S(f's_add_u32 s{30+k}, s27, s28')
    acc = 72
    for h in range(16):
        p.wait_vm(15-h)
        for r in range(4):
            x = 8+4*h+r
            if h == 0:
                V(f'v_lshlrev_b32 v{acc+2*r}, 16, v{x}', [acc+2*r], [x])
                V(f'v_and_b32 v{acc+2*r+1}, 0xffff0000, v{x}', [acc+2*r+1], [x])
            else:
                V(f'v_lshlrev_b32 v4, 16, v{x}', [4], [x])
                V(f'v_and_b32 v5, 0xffff0000, v{x}', [5], [x])
                V(f'v_add_f32 v{acc+2*r}, v{acc+2*r}, v4', [acc+2*r], [acc+2*r, 4])
                V(f'v_add_f32 v{acc+2*r+1}, v{acc+2*r+1}, v5', [acc+2*r+1], [acc+2*r+1, 5])
    for r in range(4):
        V(f'v_cvt_pk_bf16_f32 v{8+r}, v{acc+2*r}, v{acc+2*r+1}', [8+r], [acc+2*r, acc+2*r+1])
    p.vstore('buffer_store_dwordx2 v[8:9], v2, s[20:23], s30 offen', [8, 9, 2])
    S('s_cmp_eq_u32 s11, 10')
    S(f's_cbranch_scc1 L_{name}_done')
    p.vstore('buffer_store_dwordx2 v[10:11], v2, s[20:23], s31 offen', [10, 11, 2])
    p.label(f'L_{name}_done')
    p._emit('s_endpgm')
    kdesc(p, name, 80, 80, 40)

def build(path, cfg=Cfg()):
    p = Prog()
    p.raw(HEADER.rstrip())
    p.raw(f'; @launch kernel=attn_kernel grid=(256,1,1) block=(512,1,1) lds={LDS_BYTES}')
    p.raw('; @launch kernel=red_kernel grid=(1152,1,1) block=(64,1,1) lds=0')
    p.raw('.amdgcn_target "amdgcn-amd-amdhsa--gfx950"')
    attn_kernel(p, 'attn_kernel', cfg)
    reduce_kernel(p, 'red_kernel')
    open(path, 'w').write(p.text())
    return p

if __name__ == '__main__':
    p = build('v1.s')
    print({k: v for k, v in sorted(p.count.items(), key=lambda x: -x[1])})
```

```python
import re

def vr(a, n=1):
    return f'v{a}' if n == 1 else f'v[{a}:{a+n-1}]'

class Prog:
    def __init__(s):
        s.lines = []
        s.reset_state()
        s.count = {}
    def reset_state(s):
        s.n = 0
        s.valu_w = {}
        s.trans_w = {}
        s.mfma_w = {}
        s.mfma_c = {}
        s.store_r = {}
        s.dsq = []
        s.sgpr_vw = {}
        s.m0_w = -100
    def raw(s, t): s.lines.append(t)
    def label(s, t): s.lines.append(t + ':')
    def comment(s, t): s.lines.append('    ; ' + t)
    def _emit(s, t, states=1):
        s.lines.append('    ' + t)
        s.n += states
        op = t.split()[0]
        s.count[op] = s.count.get(op, 0) + 1
    def nop(s, k):
        while k > 0:
            c = min(k, 16)
            s._emit(f's_nop {c-1}', c)
            k -= c
    def fence(s):
        s.nop(10)
    def _need_ds(s, regs):
        last = -1
        for idx, d in enumerate(s.dsq):
            if d and (d & regs): last = idx
        if last >= 0:
            n_after = len(s.dsq) - 1 - last
            s.wait_lgkm(n_after)
    def wait_lgkm(s, n):
        n = min(n, 15)
        if len(s.dsq) <= n: return
        s._emit(f's_waitcnt lgkmcnt({n})')
        s.dsq = s.dsq[len(s.dsq)-n:] if n > 0 else []
    def wait_regs(s, regs):
        s._need_ds(set(regs))
    def wait_vm(s, n):
        s._emit(f's_waitcnt vmcnt({n})')
    def _haz(s, kind, R, W, Cregs=None, Dtuple=None, sR=()):
        need = 0
        def req(t, k):
            nonlocal need
            need = max(need, t + k + 1 - (s.n + 1) + 0) if False else max(need, k - (s.n - t - 1))
        for r in R:
            if kind == 'mfma':
                if r in s.valu_w: req(s.valu_w[r], 2)
                if r in s.mfma_w:
                    t, tup = s.mfma_w[r]
                    if Cregs and r in Cregs:
                        if tup != Dtuple: req(t, 6)
                    else:
                        req(t, 8)
            else:
                if r in s.mfma_w: req(s.mfma_w[r][0], 8)
                if kind == 'valu' and r in s.trans_w: req(s.trans_w[r], 1)
                if kind == 'perm' and r in s.valu_w: req(s.valu_w[r], 2)
                if kind == 'rfl' and r in s.valu_w: req(s.valu_w[r], 1)
        for r in W:
            if kind != 'mfma':
                if r in s.mfma_w: req(s.mfma_w[r][0], 8)
                if r in s.mfma_c: req(s.mfma_c[r], 3)
                if r in s.store_r: req(s.store_r[r], 2)
            else:
                if r in s.mfma_w and s.mfma_w[r][1] != Dtuple: req(s.mfma_w[r][0], 8)
                if r in s.store_r: req(s.store_r[r], 2)
        for sr in sR:
            if sr in s.sgpr_vw:
                req(s.sgpr_vw[sr], 5 if kind in ('vmem',) else 2)
        if need > 0: s.nop(need)
    @staticmethod
    def _rng(a, n): return set(range(a, a+n))
    def mfma(s, d, a, b, c=None):
        D = s._rng(d, 4); A = s._rng(a, 4); B = s._rng(b, 4)
        if c is None: C = D; cs = vr(d, 4)
        elif c == 0: C = set(); cs = '0'
        else: C = s._rng(c[1], 4); cs = vr(c[1], 4)
        s._need_ds(A | B | D | C)
        s._haz('mfma', A | B | C, D, Cregs=C, Dtuple=(d, 4))
        t = s.n
        s._emit(f'v_mfma_f32_16x16x32_bf16 {vr(d,4)}, {vr(a,4)}, {vr(b,4)}, {cs}')
        for r in D:
            s.mfma_w[r] = (t, (d, 4)); s.valu_w.pop(r, None); s.trans_w.pop(r, None)
        for r in C: s.mfma_c[r] = t
    def valu(s, text, W, R, kind='valu', sR=(), sW=()):
        W = set(W); R = set(R)
        s._need_ds(W | R)
        s._haz('valu' if kind in ('valu',) else kind, R, W, sR=sR)
        t = s.n
        s._emit(text)
        for r in W:
            s.valu_w[r] = t; s.mfma_w.pop(r, None)
            if kind == 'trans': s.trans_w[r] = t
            else: s.trans_w.pop(r, None)
        for x in sW: s.sgpr_vw[x] = t
    def salu(s, text, m0=False):
        t = s.n
        s._emit(text)
        if m0: s.m0_w = t
    def ds_read(s, text, d, n, addr):
        D = s._rng(d, n)
        s._need_ds(D | {addr})
        s._haz('ds', {addr}, D)
        s._emit(text)
        s.dsq.append(D)
        for r in D:
            s.valu_w.pop(r, None); s.mfma_w.pop(r, None); s.trans_w.pop(r, None)
    def ds_write(s, text, src, n, addr):
        S = s._rng(src, n)
        s._need_ds(S | {addr})
        s._haz('ds', S | {addr}, set())
        s._emit(text)
        s.dsq.append(None)
    def rd128(s, d, addr, off): s.ds_read(f'ds_read_b128 {vr(d,4)}, v{addr} offset:{off}', d, 4, addr)
    def rdtr(s, d, addr, off): s.ds_read(f'ds_read_b64_tr_b16 {vr(d,2)}, v{addr} offset:{off}', d, 2, addr)
    def rd32(s, d, addr, off): s.ds_read(f'ds_read_b32 v{d}, v{addr} offset:{off}', d, 1, addr)
    def wr128(s, addr, src, off): s.ds_write(f'ds_write_b128 v{addr}, {vr(src,4)} offset:{off}', src, 4, addr)
    def wr64(s, addr, src, off): s.ds_write(f'ds_write_b64 v{addr}, {vr(src,2)} offset:{off}', src, 2, addr)
    def wr32(s, addr, src, off): s.ds_write(f'ds_write_b32 v{addr}, v{src} offset:{off}', src, 1, addr)
    def dma(s, voff, srd, soff, off, pol=''):
        s._need_ds({voff})
        s._haz('vmem', {voff}, set())
        if s.n - s.m0_w - 1 < 1: s.nop(1)
        o = f' offset:{off}' if off else ''
        s._emit(f'buffer_load_dwordx4 v{voff}, s[{srd}:{srd+3}], {soff} offen{o}{pol} lds')
    def vload(s, text, W, R):
        W = set(W); R = set(R)
        s._need_ds(W | R)
        s._haz('vmem', R, W)
        s._emit(text)
        for r in W:
            s.valu_w.pop(r, None); s.mfma_w.pop(r, None); s.trans_w.pop(r, None)
    def vstore(s, text, R):
        R = set(R)
        s._need_ds(R)
        s._haz('vmem', R, set())
        t = s.n
        s._emit(text)
        for r in R: s.store_r[r] = t
    def barrier(s): s._emit('s_barrier')
    def text(s): return '\n'.join(s.lines) + '\n'

def kstart(p, name):
    p.raw('.text'); p.raw(f'.globl {name}'); p.raw('.p2align 8'); p.raw(f'.type {name},@function'); p.label(name)
    p.reset_state()

def kdesc(p, name, vgpr, accum, sgpr=102):
    for t in ['.section .rodata,"a"', '.p2align 6', f'.amdhsa_kernel {name}', f'  .amdhsa_next_free_vgpr {vgpr}',
              f'  .amdhsa_next_free_sgpr {sgpr}', f'  .amdhsa_accum_offset {accum}', '  .amdhsa_group_segment_fixed_size 0',
              '  .amdhsa_kernarg_size 64', '  .amdhsa_user_sgpr_count 2', '  .amdhsa_user_sgpr_kernarg_segment_ptr 1',
              '  .amdhsa_system_sgpr_workgroup_id_x 1', '.end_amdhsa_kernel', '.text']:
        p.raw(t)

def interleave(mf, fill):
    out = []
    nm = len(mf); nf = len(fill)
    fi = 0
    for k in range(nm):
        out.append(mf[k])
        target = ((k + 1) * nf + nm - 1) // nm
        while fi < nf and fi < target and fill[fi][0] <= k:
            out.append(fill[fi][1]); fi += 1
    while fi < nf:
        out.append(fill[fi][1]); fi += 1
    return out
```

```python
import math, struct, sys
from asmlib import *

HEADER = open('standalone__gqa_block_cached__near_ridge.s.ref').read().split('; Override launch')[0]
def fbits(x): return struct.unpack('<I', struct.pack('<f', x))[0]

SLOT = 32768
XB = 131072
ST = XB + 30720
FLAG = ST + 1280
LDS_BYTES = 163840
sX, sK, sV, sWQ, sWO, sWS = 20, 24, 28, 32, 36, 40
sW, sJ, sI, sC = 44, 45, 46, 47
sONES, sHX, sQH = 48, 49, 50
sM0A, sM0D, sMODE, sC0 = 52, 53, 54, 55
sT0, sT1, sT2, sT3 = 56, 57, 58, 59
sCH, sPAIR, sU, sJH = 60, 61, 62, 63
sOFF = 64
vL = 0
vMX = 1
CQ = 4
vTR = 16
vKR = 20
vLIN1, vPW0, vT0, vT1, vJUNK, vLIN0 = 22, 23, 24, 25, 26, 27
vPW = [23, 5, 6]
vLS = [9, 10, 11]
vONE = 12
QREG, PREG, TREG, FREG = 28, 124, 220, 232
NA = 6
vDK, vDV, vDWQ, vDWO = TREG+8, TREG+9, TREG+10, TREG+11
vDX, vXR = PREG+60, PREG+61
vST = PREG + 95
THRESH = 24.0
B0, C0_, D0, NEND = 7, 23, 39, 47
T1 = [(t, d) for t in range(4) for d in (0, 2, 1, 3)]
T3 = [(0,0),(0,2),(1,0),(1,2),(0,1),(0,3),(2,0),(2,2),(1,1),(1,3),(3,0),(3,2),(2,1),(2,3),(3,1),(3,3)]

class Cfg:
    kv_pol = ''; w_pol = ''; st_pol = ''
    prio = 1
    warm = True
    stamps = False
    no_dma = False; no_sm = False; no_lds = False; no_mfma = False
    dma_lo = 0.75; dma_hi = 1.0
    types = (T1, T3)
    lockstep = False

class Wave:
    def __init__(s, p, i, cfg):
        s.p = p; s.i = i; s.cfg = cfg
        s.NRT = 3 if i == 0 else 2
        s.RT0 = 0 if i == 0 else 3
        s.vm = []; s.nbar = 0; s.nst = 0
        s.hi = {'tr': 0, 'kr': 0, 'wo': 0}
    def bar(s):
        s.p.barrier(); s.nbar += 1
        s.stamp()
    def stamp(s):
        if not (s.cfg.stamps and s.i == 1): return
        p = s.p; k = s.nst
        if k > 0: p._emit(f'v_writelane_b32 v{vST}, s{80 + 2*((k-1) % 4)}, {k-1}')
        p._emit(f's_memrealtime s[{80 + 2*(k % 4)}:{81 + 2*(k % 4)}]')
        s.nst += 1
    def stamp_flush(s):
        if not (s.cfg.stamps and s.i == 1): return
        p = s.p
        s.stamp()
        p._emit('s_waitcnt vmcnt(0) lgkmcnt(0)')
        s.stamp()
        p._emit('s_waitcnt lgkmcnt(0)')
        p._emit(f'v_writelane_b32 v{vST}, s{80 + 2*((s.nst-1) % 4)}, {s.nst-1}')
        p._emit(f'v_writelane_b32 v{vST}, s90, 63')
        p._emit('s_memtime s[98:99]'); p._emit('s_waitcnt lgkmcnt(0)'); p._emit('s_sub_u32 s98, s98, s96')
        p._emit(f'v_writelane_b32 v{vST}, s98, 62')
        p._emit(f's_cmp_lg_u32 s{sW}, 4'); p._emit(f's_cbranch_scc1 L_nost')
        p._emit(f's_lshl_b32 s{sT0}, s2, 8'); p._emit(f's_add_u32 s{sT0}, s{sT0}, {32 << 20}')
        p._emit(f's_mov_b32 s92, s18'); p._emit('s_and_b32 s93, s19, 0xffff'); p._emit(f's_mov_b32 s94, {64 << 20}'); p._emit('s_mov_b32 s95, 0x00020000')
        p._emit(f'v_lshlrev_b32 v{vT0}, 2, v{vL}')
        p._emit(f'buffer_store_dword v{vST}, v{vT0}, s[92:95], s{sT0} offen')
        p.label('L_nost')
    def vm_issue(s, tag): s.vm.append(tag)
    def vm_wait(s, tag):
        idx = max([k for k, t in enumerate(s.vm) if t == tag], default=-1)
        if idx < 0: return
        s.p.wait_vm(len(s.vm) - 1 - idx)
    def toggle(s, which, regs, want):
        if s.hi[which] != want:
            for r in regs: s.p.valu(f'v_xor_b32 v{r}, 0x10000, v{r}', [r], [r])
            s.hi[which] = want
    def dma_thunks(s, n, part=None):
        p = s.p; cfg = s.cfg
        base = (n % 4) * SLOT
        if n >= NEND or cfg.no_dma: return []
        pcs = []
        if n < B0:
            pre = [f's_lshl_b32 s{sT0}, s{sCH}, 19', f's_add_u32 s{sT1}, s{sT0}, 262144', f's_add_u32 s{sCH}, s{sCH}, 1',
                   f's_cmp_eq_u32 s{sCH}, 7', f's_cselect_b32 s{sCH}, 0, s{sCH}']
            for ks in range(2):
                for q in range(4):
                    pcs.append((pre, vDWQ, sWQ, sT0+ks, q, sM0A, base + ks*16384 + q*896, cfg.w_pol)); pre = []
        elif n < C0_:
            pos = n - B0
            for ks in range(2):
                if part is not None and ks != part: continue
                if ks == 0: pre = []; so = sOFF + pos
                else: pre = [f's_add_u32 s{sT1}, s{sOFF+pos}, 16384']; so = sT1
                for q in range(4):
                    pcs.append((pre, vDK, sK, so, q, sM0A, base + ks*16384 + q*896, cfg.kv_pol)); pre = []
        elif n < D0:
            tt = n - C0_; pr, od = tt >> 1, tt & 1
            pre = []
            if od == 0:
                pre = [f's_cmp_eq_u32 s{sJH}, 0', f's_cselect_b32 s{sPAIR}, s{sOFF+2*pr}, s{sOFF+2*pr+1}',
                       f's_add_u32 s{sPAIR}, s{sPAIR}, s{sQH}']
            else:
                pre = [f's_xor_b32 s{sPAIR}, s{sPAIR}, 16384']
            for ks in range(2):
                if ks == 0: so = sPAIR
                else: pre = [f's_add_u32 s{sT1}, s{sPAIR}, 8192']; so = sT1
                for q in range(4):
                    pcs.append((pre, vDV, sV, so, q, sM0A, base + ks*16384 + q*896, cfg.kv_pol)); pre = []
        else:
            sp = n - D0
            pre = [f's_mov_b32 s{sT0}, {sp*32*896}']
            for q in range(7):
                pcs.append((pre, vDWO, sWO, sT0, q, sM0D, base + q*896, cfg.w_pol)); pre = []
        th = []
        for k, (pre, voff, srd, so, q, m0s, m0imm, pol) in enumerate(pcs):
            def f(k=k, pre=pre, voff=voff, srd=srd, so=so, q=q, pol=pol):
                if k == 0:
                    p.salu(f's_add_u32 m0, s{pcs[0][5]}, {pcs[0][6]}', m0=True)
                for t in pre: p.salu(t)
                p.dma(voff, srd, f's{so}', q*128, pol)
                s.vm_issue(n)
                if k + 1 < len(pcs):
                    p.salu(f's_add_u32 m0, s{pcs[k+1][5]}, {pcs[k+1][6]}', m0=True)
            th.append(f)
        return th
    def xdma_thunks(s, m):
        p = s.p; cfg = s.cfg
        if m >= 7 or cfg.no_dma: return []
        def f():
            buf = XB + (m % 3)*10240
            p.salu(f's_add_u32 m0, s{sM0A}, {buf + 8*1024}', m0=True)
            p.salu(f's_lshl_b32 s{sT0}, s{sCH}, 7')
            p.salu(f's_add_u32 s{sT1}, s{sT0}, {32*896}')
            p.salu(f's_add_u32 s{sT2}, s{sT0}, {64*896}')
            p.salu(f's_add_u32 s{sCH}, s{sCH}, 1')
            p.salu(f's_cmp_eq_u32 s{sCH}, 7')
            p.salu(f's_cselect_b32 s{sCH}, 0, s{sCH}')
            lab = f'L_x3_{m}'
            p.salu(f's_cmp_lg_u32 s{sJH}, 0')
            p.salu(f's_cbranch_scc1 {lab}')
            p.dma(vDX, sX, f's{sT2}', 0, cfg.w_pol)
            p.label(lab)
            for r in range(2):
                p.salu(f's_add_u32 m0, s{sM0A}, {buf + r*4096}', m0=True)
                p.dma(vDX, sX, f's{sT0+r}', 0, cfg.w_pol)
                s.vm_issue(('x', m))
        return [f]
    def afrag_read(s, n, k, buf):
        p = s.p
        if s.cfg.no_lds: return
        d = FREG + 4*buf
        base = (n % 4) * SLOT
        hi, lo = base >> 16, base & 0xffff
        if n < B0 or (C0_ <= n < D0):
            dt, ks = k >> 1, k & 1
            s.toggle('tr', range(vTR, vTR+4), hi)
            p.rdtr(d, vTR+dt, lo + ks*16384)
            p.rdtr(d+2, vTR+dt, lo + ks*16384 + 8192)
        elif n < C0_:
            s.toggle('kr', range(vKR, vKR+2), hi)
            p.rd128(d, vKR + (k & 1), lo + (k >> 1)*1024)
        else:
            s.toggle('wo', [vKR], hi)
            p.rdtr(d, vKR, lo + k*1024)
            p.rdtr(d+2, vKR, lo + k*1024 + 14336)
    def nfr(s, n): return 7 if n >= D0 else 8
    def fidx(s, n, k): return (n*8 + k) if n < D0 else (D0*8 + (n-D0)*7 + k)
    def frag_of(s, f):
        if f < D0*8: return f // 8, f % 8
        g = f - D0*8
        return D0 + g // 7, g % 7
    def qf(s, ss, rt): return QREG + (ss*s.NRT + rt)*4
    def pq(s, pr, rt): return PREG + (pr*s.NRT + rt)*4
    def sacc(s, ks_, rt): return s.pq(ks_ >> 1, rt) if ks_ % 2 == 0 else TREG + 4*rt
    def bbuf(s, n, ks, rt): return QREG + ((n if n < B0 else n-C0_) % 2)*24 + (ks*s.NRT + rt)*4
    def aacc(s, dt, rt): return PREG + (dt*s.NRT + rt)*4
    def oacc(s, dt, rt): return QREG + 48 + (dt*s.NRT + rt)*4
    def uacc(s, q, rt): return PREG + (q*s.NRT + rt)*4
    def mfmas(s, n):
        p = s.p; out = []
        for k in range(s.nfr(n)):
            a = FREG + 4*(s.fidx(n, k) % NA)
            for rt in range(s.NRT):
                if n < B0:
                    dt, ks = k >> 1, k & 1
                    c = 0 if (n == 0 and ks == 0) else None
                    out.append(lambda a=a, dt=dt, ks=ks, rt=rt, c=c: p.mfma(s.aacc(dt, rt), a, s.bbuf(n, ks, rt), c))
                elif n < C0_:
                    c = None if k else (0 if n - B0 < 2 else ('v', CQ + 4*rt))
                    out.append(lambda a=a, k=k, rt=rt, c=c: p.mfma(s.sacc(n-B0, rt), a, s.qf(k, rt), c))
                elif n < D0:
                    dt, ks = k >> 1, k & 1
                    c = 0 if (n == C0_ and ks == 0) else None
                    out.append(lambda a=a, dt=dt, ks=ks, rt=rt, c=c: p.mfma(s.oacc(dt, rt), a, s.bbuf(n, ks, rt), c))
                else:
                    out.append(lambda a=a, k=k, rt=rt: p.mfma(s.uacc(k, rt), a, s.qf(n-D0, rt), 0 if n == D0 else None))
        return out
    def bfrag_thunks(s, n):
        p = s.p; th = []
        if n < B0:
            for ks in range(2):
                for rt in range(s.NRT):
                    th.append(lambda ks=ks, rt=rt: p.rd128(s.bbuf(n, ks, rt), vXR+ks, (n % 3)*10240 + (s.RT0+rt)*2048))
        elif C0_ <= n < D0:
            t = n - C0_
            for ks in range(2):
                for rt in range(s.NRT):
                    th.append(lambda ks=ks, rt=rt: p.rd128(s.bbuf(n, ks, rt), vLIN1, XB - 98304 + (t % 3)*10240 + (ks*5 + s.RT0 + rt)*1024))
        return th
    def bregs(s, n):
        r = set()
        if n < B0 or C0_ <= n < D0:
            for ks in range(2):
                for rt in range(s.NRT):
                    b = s.bbuf(n, ks, rt); r |= set(range(b, b+4))
        return r
    def softmax_thunks(s, ks_):
        p = s.p; th = []
        if s.cfg.no_sm: return th
        for rt in range(s.NRT):
            a = s.sacc(ks_, rt); q = s.pq(ks_ >> 1, rt)
            m, mx = CQ + 4*rt, vMX+rt
            if ks_ < 2:
                for r in range(4):
                    th.append(lambda r=r, a=a, m=m: p.valu(f'v_add_f32 v{a+r}, v{a+r}, v{m}', [a+r], [a+r, m]))
            th.append(lambda a=a, mx=mx: p.valu(f'v_max3_f32 v{mx}, v{mx}, v{a}, v{a+1}', [mx], [mx, a, a+1]))
            th.append(lambda a=a, mx=mx: p.valu(f'v_max3_f32 v{mx}, v{mx}, v{a+2}, v{a+3}', [mx], [mx, a+2, a+3]))
            for r in range(4):
                th.append(lambda r=r, a=a: p.valu(f'v_exp_f32 v{a+r}, v{a+r}', [a+r], [a+r], kind='trans'))
            d0 = q + 2*(ks_ & 1)
            th.append(lambda a=a, d0=d0: p.valu(f'v_cvt_pk_bf16_f32 v{d0}, v{a}, v{a+1}', [d0], [a, a+1]))
            th.append(lambda a=a, d0=d0: p.valu(f'v_cvt_pk_bf16_f32 v{d0+1}, v{a+2}, v{a+3}', [d0+1], [a+2, a+3]))
        return th
    def greduce(s, x, t, op):
        p = s.p
        for sw in ('v_permlane32_swap_b32', 'v_permlane16_swap_b32'):
            p.valu(f'v_mov_b32 v{t}, v{x}', [t], [x])
            p.valu(f'{sw} v{x}, v{t}', [x, t], [x, t], kind='perm')
            p.valu(f'{op} v{x}, v{x}, v{t}', [x], [x, t])
    def stat_addr(s, d, write):
        p = s.p
        p.valu(f'v_and_b32 v{d}, 15, v{vL}', [d], [vL])
        p.valu(f'v_lshlrev_b32 v{d}, 4, v{d}', [d], [d])
        if write:
            p.salu(f's_lshl_b32 s{sT3}, s{sJ}, 2')
            p.salu(f's_add_u32 s{sT3}, s{sT3}, {ST}')
            p.valu(f'v_add_u32 v{d}, s{sT3}, v{d}', [d], [d])
        else:
            p.valu(f'v_add_u32 v{d}, {ST}, v{d}', [d], [d])
    def run(s, n, extra, pre=(), post=()):
        p = s.p
        mf = s.mfmas(n); nm = len(mf)
        fill = list(extra)
        for k in range(s.nfr(n)):
            f = s.fidx(n, k) + NA
            n2, k2 = s.frag_of(f)
            if n2 < NEND:
                fill.append(((k+1)*s.NRT - 1 + 0.5, lambda n2=n2, k2=k2, f=f: s.afrag_read(n2, k2, f % NA)))
        fill.sort(key=lambda x: x[0])
        for t in pre: t()
        fi = 0
        while fi < len(fill) and fill[fi][0] < 0:
            fill[fi][1](); fi += 1
        for k in range(nm):
            if not s.cfg.no_mfma: mf[k]()
            while fi < len(fill) and fill[fi][0] < k+1:
                fill[fi][1](); fi += 1
        while fi < len(fill):
            fill[fi][1](); fi += 1
        for t in post: t()
    def spread(s, th, lo, hi):
        n = len(th)
        return [(lo + (hi-lo)*(k+0.5)/n, t) for k, t in enumerate(th)] if n else []
    def end_interval(s, n):
        p = s.p
        p.wait_regs(s.bregs(n+1))
        if any(d is None for d in p.dsq):
            last = max(k for k, d in enumerate(p.dsq) if d is None)
            p.wait_lgkm(len(p.dsq) - 1 - last)
        if s.i == 1: s.vm_wait(n+2)
        else: s.vm_wait(('x', n+2))
        s.bar()
    def pw_addr(s, k):
        p = s.p
        p.salu(f's_and_b32 s{sT3}, s{sJ}, 1')
        p.salu(f's_mul_i32 s{sT3}, s{sT3}, 5120')
        p.salu(f's_mov_b32 s{sT2}, {XB + ((k+1) % 3)*10240}')
        p.salu(f's_cmp_eq_u32 s{sHX}, 0')
        p.salu(f's_cselect_b32 s{sT2}, {XB + k*10240}, s{sT2}')
        p.salu(f's_add_u32 s{sT2}, s{sT2}, s{sT3}')
        p.valu(f'v_add_u32 v{vPW[k]}, s{sT2}, v{vLIN0}', [vPW[k]], [vLIN0])

    def program(s):
        p = s.p; i = s.i; NRT = s.NRT; cfg = s.cfg
        V = p.valu
        p.label(f'L_restart{i}')
        p.reset_state()
        s.hi = {'tr': 0, 'kr': 0, 'wo': 0}
        t0, t1, t2, t3 = vT0, vT1, PREG+70, PREG+71
        V(f'v_lshrrev_b32 v{t0}, 3, v{vL}', [t0], [vL])
        V(f'v_and_b32 v{t1}, 7, v{vL}', [t1], [vL])
        V(f'v_xor_b32 v{t1}, v{t1}, v{t0}', [t1], [t1, t0])
        V(f'v_lshlrev_b32 v{t1}, 4, v{t1}', [t1], [t1])
        p.salu(f's_mov_b32 s{sCH}, s{sC0}')
        if i == 1:
            V(f'v_and_b32 v{t2}, 3, v{t0}', [t2], [t0])
            V(f'v_lshrrev_b32 v{t3}, 2, v{t0}', [t3], [t0])
            V(f'v_lshl_add_u32 v{t2}, v{t3}, 3, v{t2}', [t2], [t2, t3])
            p.salu(f's_and_b32 s{sT0}, s{sJ}, 1')
            p.salu(f's_lshl_b32 s{sT0}, s{sT0}, 4')
            p.salu(f's_lshl_b32 s{sT1}, s{sJH}, 2')
            p.salu(f's_add_u32 s{sT0}, s{sT0}, s{sT1}')
            V(f'v_add_u32 v{t2}, s{sT0}, v{t2}', [t2], [t2])
            V(f'v_lshl_add_u32 v{vDWQ}, v{t2}, 13, v{t1}', [vDWQ], [t2, t1])
            for n in range(3):
                for t in s.dma_thunks(n): t()
            V(f'v_lshl_add_u32 v{t2}, v{t0}, 9, v{t1}', [t2], [t0, t1])
            V(f'v_add_u32 v{vDK}, s{sM0A}, v{t2}', [vDK], [t2])
            p.salu(f's_and_b32 s{sT0}, s{sJ}, 1')
            p.salu(f's_lshl_b32 s{sT0}, s{sT0}, 12')
            V(f'v_add_u32 v{vDV}, s{sT0}, v{t2}', [vDV], [t2])
            p.salu(f's_lshl_b32 s{sT0}, s{sJ}, 3')
            V(f'v_add_u32 v{t2}, s{sT0}, v{t0}', [t2], [t0])
            V(f'v_mul_u32_u24 v{t2}, 896, v{t2}', [t2], [t2])
            V(f'v_add_u32 v{vDWO}, v{t2}, v{t1}', [vDWO], [t2, t1])
        else:
            p.salu(f's_lshl_b32 s{sT0}, s{sJ}, 3')
            V(f'v_add_u32 v{t2}, s{sT0}, v{t0}', [t2], [t0])
            V(f'v_mul_u32_u24 v{t2}, 896, v{t2}', [t2], [t2])
            V(f'v_add_u32 v{vDX}, v{t2}, v{t1}', [vDX], [t2, t1])
            p.salu(f's_lshr_b32 s{sM0A}, s{sM0A}, 2')
            for m in range(3):
                for t in s.xdma_thunks(m): t()
        V(f'v_bfe_u32 v{t0}, v{vL}, 2, 3', [t0], [vL])
        V(f'v_bfe_u32 v{t1}, v{vL}, 1, 1', [t1], [vL])
        V(f'v_lshrrev_b32 v{t2}, 5, v{vL}', [t2], [vL])
        V(f'v_lshlrev_b32 v{t2}, 12, v{t2}', [t2], [t2])
        V(f'v_lshl_add_u32 v{t2}, v{t0}, 7, v{t2}', [t2], [t0, t2])
        V(f'v_and_b32 v{t3}, 1, v{vL}', [t3], [vL])
        V(f'v_lshl_add_u32 v{t2}, v{t3}, 3, v{t2}', [t2], [t3, t2])
        p.salu(f's_lshl_b32 s{sT0}, s{sJ}, 10')
        V(f'v_add_u32 v{t2}, s{sT0}, v{t2}', [t2], [t2])
        for tau in range(4):
            V(f'v_or_b32 v{t3}, {2*tau}, v{t1}', [t3], [t1])
            V(f'v_xor_b32 v{t3}, v{t3}, v{t0}', [t3], [t3, t0])
            V(f'v_lshl_add_u32 v{vTR+tau}, v{t3}, 4, v{t2}', [vTR+tau], [t3, t2])
        V(f'v_and_b32 v{t0}, 7, v{vL}', [t0], [vL])
        V(f'v_lshrrev_b32 v{t1}, 4, v{vL}', [t1], [vL])
        V(f'v_bfe_u32 v{t2}, v{vL}, 3, 1', [t2], [vL])
        for e in range(2):
            V(f'v_or_b32 v{t3}, {4*e}, v{t1}', [t3], [t1])
            V(f'v_xor_b32 v{t3}, v{t3}, v{t0}', [t3], [t3, t0])
            V(f'v_lshlrev_b32 v{t3}, 4, v{t3}', [t3], [t3])
            V(f'v_lshl_add_u32 v{t3}, v{t0}, 7, v{t3}', [t3], [t0, t3])
            V(f'v_lshl_add_u32 v{vXR+e}, v{t2}, 10, v{t3}', [vXR+e], [t2, t3])
            V(f'v_add_u32 v{vXR+e}, {XB}, v{vXR+e}', [vXR+e], [vXR+e])
            V(f'v_lshl_add_u32 v{vKR+e}, v{t2}, 12, v{t3}', [vKR+e], [t2, t3])
            p.salu(f's_lshl_b32 s{sT0}, s{sJ}, 13')
            V(f'v_add_u32 v{vKR+e}, s{sT0}, v{vKR+e}', [vKR+e], [vKR+e])
        V(f'v_lshlrev_b32 v{vLIN0}, 4, v{vL}', [vLIN0], [vL])
        V(f'v_add_u32 v{vLIN1}, 98304, v{vLIN0}', [vLIN1], [vLIN0])
        V(f'v_mov_b32 v{t0}, 0', [t0], [])
        V(f'v_mov_b32 v{t1}, {FLAG}', [t1], [])
        p.wr32(t1, t0, 0)
        for rt in range(NRT):
            V(f'v_mov_b32 v{vMX+rt}, 0xff800000', [vMX+rt], [])
        s.pw_addr(0)
        p.wait_lgkm(0)
        if i == 1: s.vm_wait(0)
        else: s.vm_wait(('x', 0))
        s.bar()
        for t in s.bfrag_thunks(0): t()
        for f in range(NA): s.afrag_read(0, f, f)
        s.end_interval(-1)

        for n in range(NEND):
            nm = s.nfr(n)*NRT
            ex = []; pre = []; post = []
            if i == 1:
                if n + 3 == 10: th = s.dma_thunks(10, part=0)
                elif n + 3 == 11: th = s.dma_thunks(10, part=1) + s.dma_thunks(11)
                else: th = s.dma_thunks(n+3)
                ex += s.spread(th, nm*cfg.dma_lo - 0.5 if cfg.dma_lo == 0 else nm*cfg.dma_lo, nm*cfg.dma_hi)
            else:
                ex += s.spread(s.xdma_thunks(n+3), 0, 1)
            if n + 1 == C0_: ex += s.spread(s.bfrag_thunks(n+1), 2*NRT+0.2, 5*NRT)
            else: ex += s.spread(s.bfrag_thunks(n+1), 0, nm*0.6)
            if n == B0 - 1:
                def qaddr():
                    V(f'v_lshrrev_b32 v{vT0}, 5, v{vL}', [vT0], [vL])
                    V(f'v_lshlrev_b32 v{vT0}, 8, v{vT0}', [vT0], [vT0])
                    V(f'v_and_b32 v{vT1}, 15, v{vL}', [vT1], [vL])
                    V(f'v_lshl_add_u32 v{vT0}, v{vT1}, 4, v{vT0}', [vT0], [vT1, vT0])
                    V(f'v_bfe_u32 v{vT1}, v{vL}, 4, 1', [vT1], [vL])
                    V(f'v_lshl_add_u32 v{vT0}, v{vT1}, 3, v{vT0}', [vT0], [vT1, vT0])
                    p.salu(f's_lshl_b32 s{sT3}, s{sJ}, 11')
                    p.salu(f's_add_u32 s{sT3}, s{sT3}, {XB if i == 0 else 81920}')
                    V(f'v_add_u32 v{vT0}, s{sT3}, v{vT0}', [vT0], [vT0])
                ex.append((0.5, qaddr))
                wr = []
                for dt in range(4):
                    for rt in range(NRT):
                        a = s.aacc(dt, rt)
                        def cv(a=a):
                            for r in range(4): V(f'v_mul_f32 v{a+r}, s{sC}, v{a+r}', [a+r], [a+r])
                            V(f'v_cvt_pk_bf16_f32 v{a}, v{a}, v{a+1}', [a], [a, a+1])
                            V(f'v_cvt_pk_bf16_f32 v{a+1}, v{a+2}, v{a+3}', [a+1], [a+2, a+3])
                        def w(a=a, dt=dt, rt=rt): p.wr64(vT0, a, rt*8192 + (dt >> 1)*1024 + (dt & 1)*512)
                        pos = (2*dt+2)*NRT + 3 + rt
                        ex.append((pos, cv))
                        if i == 0: ex.append((pos + 0.1, w))
                        else: wr.append(w)
                post.append(lambda: s.bar())
                post += wr
            if n == B0:
                pre.append(lambda: V(f'v_add_u32 v{vT0}, {XB if i == 0 else 81920}, v{vLIN0}', [vT0], [vLIN0]))
                th = [(lambda ss=ss, rt=rt: p.rd128(s.qf(ss, rt), vT0, rt*8192 + ss*1024)) for ss in range(8) for rt in range(NRT)]
                nup = 4*NRT
                pre += th[:nup]
                for k, t in enumerate(th[nup:]): ex.append((k + 0.3, t))
                def tmax():
                    s.stat_addr(vT1, True)
                    for rt in range(NRT):
                        a = s.sacc(0, rt); x = s.pq(7, rt)
                        V(f'v_max3_f32 v{x}, v{a}, v{a+1}, v{a+2}', [x], [a, a+1, a+2])
                        V(f'v_max_f32 v{x}, v{x}, v{a+3}', [x], [x, a+3])
                        s.greduce(x, x+1, 'v_max_f32')
                        p.wr32(vT1, x, (s.RT0+rt)*256)
                post.append(tmax)
            if n == B0 + 1:
                def m0get():
                    s.stat_addr(vT1, False)
                    for rt in range(NRT): p.rd128(s.pq(7, rt), vT1, (s.RT0+rt)*256)
                def m0fin():
                    p.wait_regs([s.pq(7, rt) for rt in range(NRT)])
                    p.salu(f's_cmp_lg_u32 s{sMODE}, 0')
                    p.salu(f's_cbranch_scc1 L_havem{i}')
                    for rt in range(NRT):
                        a = s.pq(7, rt); m = CQ + 4*rt
                        V(f'v_max3_f32 v{m}, v{a}, v{a+1}, v{a+2}', [m], [a, a+1, a+2])
                        V(f'v_max_f32 v{m}, v{m}, v{a+3}', [m], [m, a+3])
                        V(f'v_sub_f32 v{m}, 0, v{m}', [m], [m])
                    p.label(f'L_havem{i}')
                    for rt in range(NRT):
                        m = CQ + 4*rt
                        for r in range(1, 4): V(f'v_mov_b32 v{m+r}, v{m}', [m+r], [m])
                ex.append((-0.1, m0get))
                ex.append((3.5, m0fin))
            if B0 + 1 <= n <= C0_:
                lo = 4 if n == B0 + 1 else 0.6
                hi = nm - 0.01 if i == 0 else nm*max(cfg.dma_lo, 0.5) if cfg.dma_lo > 0 else nm - 0.01
                ex += s.spread(s.softmax_thunks(n - B0 - 1), lo, hi)
            if n == B0 + 4 and i == 0 and cfg.warm:
                def warm():
                    p.salu(f's_mul_i32 s{sT0}, s{sU}, 112')
                    p.salu(f's_mul_i32 s{sT1}, s{sJ}, 28')
                    p.salu(f's_add_u32 s{sT0}, s{sT0}, s{sT1}')
                    V(f'v_add_u32 v{vT0}, s{sT0}, v{vL}', [vT0], [vL])
                    V(f'v_lshlrev_b32 v{vT0}, 7, v{vT0}', [vT0], [vT0])
                    V(f'v_cmp_gt_u32 vcc, 28, v{vL}', [], [vL])
                    V(f'v_mov_b32 v{vT1}, 0x70000000', [vT1], [])
                    p.nop(1)
                    V(f'v_cndmask_b32 v{vT0}, v{vT1}, v{vT0}, vcc', [vT0], [vT0, vT1])
                    p.vload(f'buffer_load_dword v{vJUNK}, v{vT0}, s[{sWO}:{sWO+3}], 0 offen', [vJUNK], [vT0])
                    s.vm_issue('warm')
                ex.append((5.5, warm))
            t = n - C0_
            if t == 0:
                ex.append((1.5, lambda: s.pw_addr(2)))
                ex.append((2.5, lambda: s.pw_addr(1)))
            if -2 <= t <= 12 and t % 2 == 0:
                pr = t//2 + 1
                th = [(lambda rt=rt, pr=pr: p.wr128(vPW[(2*pr) % 3], s.pq(pr, rt), (s.RT0+rt)*1024)) for rt in range(NRT)]
                whi = nm*0.9 if i == 0 else nm*cfg.dma_lo if cfg.dma_lo >= 0.5 else nm*0.9
                ex += s.spread(th, whi - 3, whi)
            if t == 4:
                def ones():
                    for r in range(4): V(f'v_mov_b32 v{vONE+r}, s{sONES}', [vONE+r], [])
                ex.append((0.5, ones))
            if 4 <= t <= 11 and not cfg.no_mfma:
                th = [(lambda rt=rt, pr=t-4: p.mfma(TREG + 4*rt, vONE, s.pq(pr, rt), 0 if pr == 0 else None)) for rt in range(NRT)]
                ex += s.spread(th, 3, nm*0.6)
            if t == 1:
                def chk():
                    if NRT == 3: V(f'v_max3_f32 v{vT0}, v{vMX}, v{vMX+1}, v{vMX+2}', [vT0], [vMX, vMX+1, vMX+2])
                    else: V(f'v_max_f32 v{vT0}, v{vMX}, v{vMX+1}', [vT0], [vMX, vMX+1])
                    V(f'v_cmp_nge_f32 vcc, {fbits(THRESH):#x}, v{vT0}', [], [vT0])
                    p.nop(5)
                    p.salu(f's_cbranch_vccz L_safe{i}')
                    V(f'v_mov_b32 v{vT0}, 1', [vT0], [])
                    V(f'v_mov_b32 v{vT1}, {FLAG}', [vT1], [])
                    p._emit(f'ds_write_b32 v{vT1}, v{vT0}')
                    p._emit('s_waitcnt lgkmcnt(0)')
                    p.label(f'L_safe{i}')
                ex.append((4.5, chk))
            if t == 3:
                def flagrd():
                    V(f'v_mov_b32 v{vT1}, {FLAG}', [vT1], [])
                    p.rd32(vT0, vT1, 0)
                ex.append((1.5, flagrd))
                def flagchk():
                    V(f'v_readfirstlane_b32 s{sT3}, v{vT0}', [], [vT0], kind='rfl')
                    p.nop(1)
                    p.salu(f's_andn2_b32 s{sT3}, s{sT3}, s{sMODE}')
                    p.salu(f's_cbranch_scc1 L_redo{i}')
                post.append(flagchk)
            if t == 13:
                def lsum():
                    s.stat_addr(vT1, True)
                    for rt in range(NRT): p.wr32(vT1, TREG + 4*rt, (s.RT0+rt)*256)
                ex.append((4.5, lsum))
            if t == 14:
                def lget():
                    s.stat_addr(vT1, False)
                    for rt in range(NRT): p.rd128(TREG + 4*rt, vT1, (s.RT0+rt)*256)
                ex.append((1.5, lget))
                def lfin():
                    for rt in range(NRT):
                        a = TREG + 4*rt; l = vLS[rt]
                        V(f'v_add_f32 v{a}, v{a}, v{a+1}', [a], [a, a+1])
                        V(f'v_add_f32 v{a+2}, v{a+2}, v{a+3}', [a+2], [a+2, a+3])
                        V(f'v_add_f32 v{l}, v{a}, v{a+2}', [l], [a, a+2])
                        V(f'v_rcp_f32 v{l}, v{l}', [l], [l], kind='trans')
                ex.append((nm*0.6, lfin))
            if n == D0 - 2:
                def woaddr():
                    V(f'v_bfe_u32 v{vT0}, v{vL}, 2, 3', [vT0], [vL])
                    V(f'v_bfe_u32 v{vT1}, v{vL}, 1, 1', [vT1], [vL])
                    p.salu(f's_lshl_b32 s{sT3}, s{sJ}, 1')
                    V(f'v_or_b32 v{vT1}, s{sT3}, v{vT1}', [vT1], [vT1])
                    V(f'v_xor_b32 v{vT1}, v{vT1}, v{vT0}', [vT1], [vT1, vT0])
                    V(f'v_lshlrev_b32 v{vT1}, 4, v{vT1}', [vT1], [vT1])
                    V(f'v_lshl_add_u32 v{vT1}, v{vT0}, 7, v{vT1}', [vT1], [vT0, vT1])
                    V(f'v_and_b32 v{vT0}, 1, v{vL}', [vT0], [vL])
                    V(f'v_lshl_add_u32 v{vT1}, v{vT0}, 3, v{vT1}', [vT1], [vT0, vT1])
                    V(f'v_lshrrev_b32 v{vT0}, 5, v{vL}', [vT0], [vL])
                    V(f'v_mul_u32_u24 v{vT0}, 7168, v{vT0}', [vT0], [vT0])
                    V(f'v_add_u32 v{vKR}, v{vT0}, v{vT1}', [vKR], [vT0, vT1])
                ex.append((2.5, woaddr))
            if n == D0 - 1:
                def oaddr():
                    if i == 0:
                        p.salu(f's_lshl_b32 s{sT3}, s{sJ}, 11')
                        p.salu(f's_add_u32 s{sT3}, s{sT3}, {XB}')
                    else:
                        p.salu(f's_mov_b32 s{sT3}, {3*SLOT+28672}')
                        for jj, ad in ((1, 28672), (2, SLOT+28672), (3, XB+24576)):
                            p.salu(f's_cmp_eq_u32 s{sJ}, {jj}')
                            p.salu(f's_cselect_b32 s{sT3}, {ad}, s{sT3}')
                    V(f'v_add_u32 v{vT0}, s{sT3}, v{vLIN0}', [vT0], [vLIN0])
                ex.append((0.5, oaddr))
                for e in range(2):
                    for rt in range(NRT):
                        a0, a1 = s.oacc(2*e, rt), s.oacc(2*e+1, rt)
                        def nrm(a, d, rt=rt):
                            for r in range(4): V(f'v_mul_f32 v{a+r}, v{a+r}, v{vLS[rt]}', [a+r], [a+r, vLS[rt]])
                            V(f'v_cvt_pk_bf16_f32 v{d}, v{a}, v{a+1}', [d], [a, a+1])
                            V(f'v_cvt_pk_bf16_f32 v{d+1}, v{a+2}, v{a+3}', [d+1], [a+2, a+3])
                        ex.append(((4*e+2)*NRT + 3 + rt, lambda a0=a0, nrm=nrm: nrm(a0, a0)))
                        def second(a0=a0, a1=a1, nrm=nrm, e=e, rt=rt):
                            nrm(a1, a0+2)
                            p.wr128(vT0, a0, (rt*8192 + e*1024) if i == 0 else (e*2 + rt)*1024)
                        ex.append(((4*e+4)*NRT + 3 + rt, second))
            if n == D0:
                th = []
                for ss in range(8):
                    for rt in range(NRT):
                        if i == 0:
                            th.append(lambda ss=ss, rt=rt: p.rd128(s.qf(ss, rt), vLIN1, XB - 98304 + rt*8192 + ss*1024))
                        else:
                            ad = [3*SLOT+28672, 28672, SLOT+28672, XB+24576][ss >> 1] + ((ss & 1)*2 + rt)*1024
                            if ad >= 98304: th.append(lambda ss=ss, rt=rt, ad=ad: p.rd128(s.qf(ss, rt), vLIN1, ad - 98304))
                            else: th.append(lambda ss=ss, rt=rt, ad=ad: p.rd128(s.qf(ss, rt), vLIN0, ad))
                pre += th[:NRT]
                ex += s.spread(th[NRT:], 0, nm*0.9)
            if n == NEND - 1:
                def sbase():
                    p.salu(f's_mul_i32 s{sT0}, s{sJ}, {18*1024}')
                    if i == 1: p.salu(f's_add_u32 s{sT0}, s{sT0}, {11*1024}')
                    p.salu(f's_add_u32 s{sT1}, s{sT0}, 4096')
                    p.salu(f's_add_u32 s{sT2}, s{sT0}, 8192')
                pre.append(sbase)
                nt = NRT*7
                for u in range((nt+1)//2):
                    def st(u=u):
                        d = QREG + 4*u
                        for h2 in range(2):
                            tt = min(2*u + h2, nt-1)
                            a = PREG + 4*tt
                            V(f'v_cvt_pk_bf16_f32 v{d+2*h2}, v{a}, v{a+1}', [d+2*h2], [a, a+1])
                            V(f'v_cvt_pk_bf16_f32 v{d+2*h2+1}, v{a+2}, v{a+3}', [d+2*h2+1], [a+2, a+3])
                        p.vstore(f'buffer_store_dwordx4 {vr(d,4)}, v{vLIN0}, s[{sWS}:{sWS+3}], s{sT0 + u//4} offen offset:{(u % 4)*1024}{cfg.st_pol}', list(range(d, d+4)) + [vLIN0])
                    ex.append((min(2*u+1, nt-1) + 3.5, st))
            s.run(n, ex, pre, post)
            if n < NEND - 1: s.end_interval(n)
        s.stamp_flush()
        p._emit('s_endpgm')
        p.label(f'L_redo{i}')
        p.reset_state(); p.fence()
        p._emit('s_waitcnt vmcnt(0) lgkmcnt(0)')
        p.barrier()
        s.stat_addr(vT1, True)
        for rt in range(NRT):
            V(f'v_sub_f32 v{vMX+rt}, v{vMX+rt}, v{CQ+4*rt}', [vMX+rt], [vMX+rt, CQ+4*rt])
            s.greduce(vMX+rt, vT0, 'v_max_f32')
            p.wr32(vT1, vMX+rt, (s.RT0+rt)*256)
        p.wait_lgkm(0)
        p.barrier()
        s.stat_addr(vT1, False)
        for rt in range(NRT):
            a = QREG + 4*rt; m = CQ + 4*rt
            p.rd128(a, vT1, (s.RT0+rt)*256)
            V(f'v_max3_f32 v{m}, v{a}, v{a+1}, v{a+2}', [m], [a, a+1, a+2])
            V(f'v_max_f32 v{m}, v{m}, v{a+3}', [m], [m, a+3])
            V(f'v_sub_f32 v{m}, 0, v{m}', [m], [m])
        p.wait_lgkm(0)
        p.salu(f's_mov_b32 s{sMODE}, 1')
        p.salu(f's_lshl_b32 s{sM0A}, s{sJ}, 12')
        p.barrier()
        p.fence()
        p.salu(f's_branch L_restart{i}')

def srd_off(p, d, base, off_s, nbytes):
    p.salu(f's_add_u32 s{d}, s{base}, s{off_s}')
    p.salu(f's_addc_u32 s{d+1}, s{base+1}, 0')
    p.salu(f's_and_b32 s{d+1}, s{d+1}, 0xffff')
    p.salu(f's_mov_b32 s{d+2}, {nbytes}') if isinstance(nbytes, int) else p.salu(f's_mov_b32 s{d+2}, s{nbytes[0]}')
    p.salu(f's_mov_b32 s{d+3}, 0x00020000')

def attn_kernel(p, name, cfg):
    kstart(p, name)
    S = p.salu
    S('s_cmp_ge_u32 s2, 256')
    S(f's_cbranch_scc1 L_{name}_done')
    S('s_load_dwordx16 s[4:19], s[0:1], 0')
    if cfg.stamps:
        S('s_memrealtime s[90:91]'); S('s_memtime s[96:97]')
    p.valu('v_lshrrev_b32 v1, 6, v0', [1], [0])
    p.valu(f'v_readfirstlane_b32 s{sW}, v1', [], [1], kind='rfl')
    p.valu('v_and_b32 v0, 63, v0', [0], [0])
    hkv, idx, b, q, hh, half, h, tA, tB = 80, 81, 82, 83, 84, 85, 86, 87, 88
    S(f's_and_b32 s{hkv}, s2, 7')
    S(f's_lshr_b32 s{idx}, s2, 3')
    S(f's_lshr_b32 s{b}, s{idx}, 2')
    S(f's_and_b32 s{q}, s{idx}, 3')
    S(f's_lshr_b32 s{hh}, s{q}, 1')
    S(f's_and_b32 s{half}, s{q}, 1')
    S(f's_lshl_b32 s{h}, s{hkv}, 1')
    S(f's_add_u32 s{h}, s{h}, s{hh}')
    S(f's_and_b32 s{sJ}, s{sW}, 3')
    S(f's_lshr_b32 s{sI}, s{sW}, 2')
    S(f's_lshr_b32 s{sJH}, s{sJ}, 1')
    S(f's_mov_b32 s{sC}, {fbits(math.log2(math.e)/16.0):#x}')
    S(f's_mov_b32 s{sONES}, 0x3f803f80')
    S(f's_lshl_b32 s{sM0A}, s{sJ}, 12')
    S(f's_mul_i32 s{sM0D}, s{sJ}, 7168')
    S(f's_mov_b32 s{sMODE}, 0')
    S(f's_lshl_b32 s{sU}, s{b}, 1')
    S(f's_add_u32 s{sU}, s{sU}, s{half}')
    S(f's_mul_i32 s{tA}, s{sU}, 37')
    S(f's_lshr_b32 s{tA}, s{tA}, 8')
    S(f's_mul_i32 s{tA}, s{tA}, 7')
    S(f's_sub_u32 s{sC0}, s{sU}, s{tA}')
    S('s_waitcnt lgkmcnt(0)')
    S(f's_mul_i32 s{tA}, s{sU}, {80*896}')
    srd_off(p, sX, 4, tA, 80*896)
    S(f's_lshl_b32 s{tA}, s{h}, 9')
    S(f's_sub_u32 s{tB}, {448*8192}, s{tA}')
    srd_off(p, sWQ, 10, tA, (tB,))
    S(f's_lshl_b32 s{tA}, s{b}, 3')
    S(f's_add_u32 s{tA}, s{tA}, s{hkv}')
    S(f's_lshl_b32 s{tA}, s{tA}, 19')
    srd_off(p, sK, 6, tA, 524288)
    srd_off(p, sV, 8, tA, 524288)
    S(f's_mul_i32 s{tA}, s{h}, {256*896}')
    srd_off(p, sWO, 12, tA, 256*896)
    S(f's_lshl_b32 s{tA}, s{h}, 4')
    S(f's_add_u32 s{tA}, s{tA}, s{sU}')
    S(f's_mul_i32 s{tA}, s{tA}, {72*1024}')
    srd_off(p, sWS, 18, tA, 72*1024)
    if cfg.lockstep:
        S(f's_mov_b32 s{q}, 0'); S(f's_mov_b32 s{hh}, 0')
    S(f's_xor_b32 s{sHX}, s{sJH}, s{hh}')
    S(f's_lshl_b32 s{sQH}, s{hh}, 14')
    for d in range(4):
        S(f's_add_u32 s{tA}, s{q}, {d}')
        S(f's_and_b32 s{tA}, s{tA}, 3')
        S(f's_lshl_b32 s{sT0+d}, s{tA}, 15')
    S(f's_and_b32 s{tB}, s{b}, 1')
    for pos in range(16):
        (ta, da), (tb, db) = cfg.types[0][pos], cfg.types[1][pos]
        if (ta, da) == (tb, db):
            S(f's_add_u32 s{sOFF+pos}, s{sT0+da}, {ta*131072}')
        else:
            S(f's_add_u32 s{sOFF+pos}, s{sT0+da}, {ta*131072}')
            S(f's_add_u32 s{tA}, s{sT0+db}, {tb*131072}')
            S(f's_cmp_eq_u32 s{tB}, 0')
            S(f's_cselect_b32 s{sOFF+pos}, s{sOFF+pos}, s{tA}')
    S(f's_cmp_lg_u32 s{sI}, 0')
    S('s_cbranch_scc1 L_w1')
    if cfg.prio == 0: S('s_setprio 1')
    w0 = Wave(p, 0, cfg); w0.program()
    p.label('L_w1')
    if cfg.prio == 1: S('s_setprio 1')
    w1 = Wave(p, 1, cfg); w1.program()
    assert w0.nbar == w1.nbar, (w0.nbar, w1.nbar)
    p.label(f'L_{name}_done')
    p._emit('s_endpgm')
    kdesc(p, name, 256, 256)

def reduce_kernel(p, name):
    kstart(p, name)
    S = p.salu; V = p.valu
    S('s_cmp_ge_u32 s2, 1152')
    S(f's_cbranch_scc1 L_{name}_done')
    S('s_load_dwordx2 s[4:5], s[0:1], 40')
    S('s_load_dwordx2 s[6:7], s[0:1], 56')
    S('s_and_b32 s8, s2, 15')
    S('s_lshr_b32 s9, s2, 4')
    S('s_mul_i32 s10, s9, 57')
    S('s_lshr_b32 s10, s10, 10')
    S('s_mul_i32 s11, s10, 18')
    S('s_sub_u32 s11, s9, s11')
    V('v_lshlrev_b32 v1, 4, v0', [1], [0])
    S(f's_mul_i32 s12, s8, {72*1024}')
    S('s_lshl_b32 s13, s9, 10')
    S('s_add_u32 s12, s12, s13')
    S('s_waitcnt lgkmcnt(0)')
    S('s_mov_b32 s16, s6'); S('s_and_b32 s17, s7, 0xffff'); S(f's_mov_b32 s18, {256*72*1024}'); S('s_mov_b32 s19, 0x00020000')
    S('s_mov_b32 s20, s4'); S('s_and_b32 s21, s5, 0xffff'); S(f's_mov_b32 s22, {1280*448*2}'); S('s_mov_b32 s23, 0x00020000')
    for h in range(16):
        p.vload(f'buffer_load_dwordx4 v[{8+4*h}:{11+4*h}], v1, s[16:19], s12 offen', range(8+4*h, 12+4*h), [1])
        if h < 15: S(f's_add_u32 s12, s12, {16*72*1024}')
    V('v_and_b32 v2, 15, v0', [2], [0])
    V('v_mul_u32_u24 v2, 896, v2', [2], [2])
    V('v_lshrrev_b32 v3, 4, v0', [3], [0])
    V('v_lshl_add_u32 v2, v3, 3, v2', [2], [3, 2])
    for k in range(2):
        S(f's_lshl_b32 s24, s11, 1')
        S(f's_add_u32 s24, s24, {k}')
        S('s_mul_i32 s25, s24, 43')
        S('s_lshr_b32 s25, s25, 7')
        S('s_mul_i32 s26, s25, 3')
        S('s_sub_u32 s26, s24, s26')
        S('s_sub_u32 s27, s11, 11')
        S('s_cmp_ge_u32 s11, 11')
        S('s_cselect_b32 s25, s27, s25')
        S(f's_cselect_b32 s26, {3+k}, s26')
        S('s_lshl_b32 s27, s26, 4')
        S('s_mul_i32 s29, s8, 80')
        S('s_add_u32 s27, s27, s29')
        S('s_mul_i32 s27, s27, 896')
        S('s_lshl_b32 s28, s25, 7')
        S('s_add_u32 s27, s27, s28')
        S('s_lshl_b32 s28, s10, 5')
        S(f's_add_u32 s{30+k}, s27, s28')
    acc = 72
    for h in range(16):
        p.wait_vm(15-h)
        for r in range(4):
            x = 8+4*h+r
            if h == 0:
                V(f'v_lshlrev_b32 v{acc+2*r}, 16, v{x}', [acc+2*r], [x])
                V(f'v_and_b32 v{acc+2*r+1}, 0xffff0000, v{x}', [acc+2*r+1], [x])
            else:
                V(f'v_lshlrev_b32 v4, 16, v{x}', [4], [x])
                V(f'v_and_b32 v5, 0xffff0000, v{x}', [5], [x])
                V(f'v_add_f32 v{acc+2*r}, v{acc+2*r}, v4', [acc+2*r], [acc+2*r, 4])
                V(f'v_add_f32 v{acc+2*r+1}, v{acc+2*r+1}, v5', [acc+2*r+1], [acc+2*r+1, 5])
    for r in range(4):
        V(f'v_cvt_pk_bf16_f32 v{8+r}, v{acc+2*r}, v{acc+2*r+1}', [8+r], [acc+2*r, acc+2*r+1])
    p.vstore('buffer_store_dwordx2 v[8:9], v2, s[20:23], s30 offen', [8, 9, 2])
    S('s_cmp_eq_u32 s11, 10')
    S(f's_cbranch_scc1 L_{name}_done')
    p.vstore('buffer_store_dwordx2 v[10:11], v2, s[20:23], s31 offen', [10, 11, 2])
    p.label(f'L_{name}_done')
    p._emit('s_endpgm')
    kdesc(p, name, 80, 80, 40)

def build(path, cfg=None):
    cfg = cfg or Cfg()
    p = Prog()
    p.raw(HEADER.rstrip())
    p.raw(f'; @launch kernel=attn_kernel grid=(256,1,1) block=(512,1,1) lds={LDS_BYTES}')
    p.raw('; @launch kernel=red_kernel grid=(1152,1,1) block=(64,1,1) lds=0')
    p.raw('.amdgcn_target "amdgcn-amd-amdhsa--gfx950"')
    attn_kernel(p, 'attn_kernel', cfg)
    reduce_kernel(p, 'red_kernel')
    open(path, 'w').write(p.text())
    return p

def mk(name, **kw):
    c = Cfg()
    for k, v in kw.items(): setattr(c, k, v)
    return build(f'cdna_kernels/{name}.s', c)

if __name__ == '__main__':
    p = mk('v2')
    print({k: v for k, v in sorted(p.count.items(), key=lambda x: -x[1])})
    mk('v2_ts', stamps=True)
    mk('v2_early', stamps=True, dma_lo=0, dma_hi=0.75, prio=0)
    mk('v2_late0', stamps=True, prio=0)
    mk('v2_end', stamps=True, dma_lo=1.0, dma_hi=1.0)
    mk('v2_nodma', stamps=True, no_dma=True)
    mk('v2_nomfma', stamps=True, no_mfma=True, no_sm=True, no_lds=True)
```

```python
from k2 import *
import k2

def spin_kernel(p, name, lane_end, mult=10):
    kstart(p, name)
    a = p._emit
    a('s_cmp_ge_u32 s2, 1'); a(f's_cbranch_scc1 L_{name}_done')
    a('s_load_dwordx2 s[4:5], s[0:1], 56'); a('s_load_dwordx2 s[6:7], s[0:1], 48')
    a('v_lshlrev_b32 v1, 10, v0')
    a('s_waitcnt lgkmcnt(0)')
    a('s_mov_b32 s8, s4'); a('s_and_b32 s9, s5, 0xffff'); a(f's_mov_b32 s10, {64 << 20}'); a('s_mov_b32 s11, 0x20000')
    a('s_mov_b32 s12, s6'); a('s_and_b32 s13, s7, 0xffff'); a('s_mov_b32 s14, 256'); a('s_mov_b32 s15, 0x20000')
    a(f's_mov_b32 s16, {32 << 20}')
    for k in range(4):
        a(f'buffer_load_dword v{4+k}, v1, s[8:11], s16 offen offset:{k*256 + 63*4}')
        a(f'buffer_load_dword v{8+k}, v1, s[8:11], s16 offen offset:{k*256 + lane_end*4}')
    a('s_waitcnt vmcnt(0)')
    for k in range(1, 4):
        a(f'v_min_u32 v4, v4, v{4+k}'); a(f'v_max_u32 v8, v8, v{8+k}')
    for x in (1, 2, 4, 8, 16, 32):
        a(f'v_xor_b32 v2, {x}, v0'); a('v_lshlrev_b32 v2, 2, v2')
        a('ds_bpermute_b32 v6, v2, v4'); a('ds_bpermute_b32 v7, v2, v8'); a('s_waitcnt lgkmcnt(0)')
        a('v_min_u32 v4, v4, v6'); a('v_max_u32 v8, v8, v7')
    a('v_sub_u32 v4, v8, v4'); a('v_min_u32 v4, 10000, v4')
    a('v_lshlrev_b32 v2, 2, v0')
    a('buffer_store_dword v4, v2, s[12:15], 0 offen')
    a('s_nop 0'); a('v_readfirstlane_b32 s17, v4'); a('s_nop 3')
    a(f's_mul_i32 s17, s17, {mult}')
    a('s_memrealtime s[18:19]'); a('s_waitcnt lgkmcnt(0)')
    p.label(f'L_{name}_loop')
    a('s_memrealtime s[20:21]'); a('s_waitcnt lgkmcnt(0)')
    a('s_sub_u32 s22, s20, s18'); a('s_cmp_lt_u32 s22, s17'); a(f's_cbranch_scc1 L_{name}_loop')
    a('s_waitcnt vmcnt(0)')
    p.label(f'L_{name}_done'); a('s_endpgm')
    kdesc(p, name, 16, 16)

def build_spin(path, lane_end, mult=10, **kw):
    cfg = Cfg(); cfg.stamps = True
    for k, v in kw.items(): setattr(cfg, k, v)
    p = Prog()
    p.raw(HEADER.rstrip())
    p.raw(f'; @launch kernel=attn_kernel grid=(256,1,1) block=(512,1,1) lds={LDS_BYTES}')
    p.raw('; @launch kernel=red_kernel grid=(1152,1,1) block=(64,1,1) lds=0')
    p.raw('; @launch kernel=spin_kernel grid=(1,1,1) block=(64,1,1) lds=0')
    p.raw('.amdgcn_target "amdgcn-amd-amdhsa--gfx950"')
    attn_kernel(p, 'attn_kernel', cfg)
    reduce_kernel(p, 'red_kernel')
    spin_kernel(p, 'spin_kernel', lane_end, mult)
    open(path, 'w').write(p.text())

if __name__ == '__main__':
    kw = dict(dma_lo=0, dma_hi=0.75, prio=0)
    for nm, lane, mult in (('s_zero', 0, 0), ('s_pro', 0, 10), ('s_A', 9, 10), ('s_B', 25, 10), ('s_C', 41, 10), ('s_end', 50, 10)):
        build_spin(f'cdna_kernels/{nm}.s', lane, mult, **kw)
```

```python
from spin import *

def empty_kernel(p, name):
    kstart(p, name)
    p._emit('s_endpgm')
    kdesc(p, name, 8, 8, 16)

def tail_spin(p, name, mult):
    kstart(p, name)
    a = p._emit
    a('s_cmp_ge_u32 s2, 1'); a(f's_cbranch_scc1 L_{name}_done')
    a('s_memrealtime s[24:25]')
    a('s_load_dwordx2 s[4:5], s[0:1], 56'); a('s_load_dwordx2 s[6:7], s[0:1], 48')
    a('v_lshlrev_b32 v1, 10, v0')
    a('s_waitcnt lgkmcnt(0)')
    a('s_mov_b32 s8, s4'); a('s_and_b32 s9, s5, 0xffff'); a(f's_mov_b32 s10, {64 << 20}'); a('s_mov_b32 s11, 0x20000')
    a('s_mov_b32 s12, s6'); a('s_and_b32 s13, s7, 0xffff'); a('s_mov_b32 s14, 256'); a('s_mov_b32 s15, 0x20000')
    a(f's_mov_b32 s16, {32 << 20}')
    for k in range(4):
        a(f'buffer_load_dword v{8+k}, v1, s[8:11], s16 offen offset:{k*256 + 50*4}')
    a('s_waitcnt vmcnt(0)')
    for k in range(1, 4): a(f'v_max_u32 v8, v8, v{8+k}')
    for x in (1, 2, 4, 8, 16, 32):
        a(f'v_xor_b32 v2, {x}, v0'); a('v_lshlrev_b32 v2, 2, v2')
        a('ds_bpermute_b32 v7, v2, v8'); a('s_waitcnt lgkmcnt(0)')
        a('v_max_u32 v8, v8, v7')
    a('v_sub_u32 v4, s24, v8'); a('v_min_u32 v4, 10000, v4')
    a('v_lshlrev_b32 v2, 2, v0')
    a('buffer_store_dword v4, v2, s[12:15], 0 offen')
    a('s_nop 0'); a('v_readfirstlane_b32 s17, v4'); a('s_nop 3')
    a(f's_mul_i32 s17, s17, {mult}')
    a('s_memrealtime s[18:19]'); a('s_waitcnt lgkmcnt(0)')
    p.label(f'L_{name}_loop')
    a('s_memrealtime s[20:21]'); a('s_waitcnt lgkmcnt(0)')
    a('s_sub_u32 s22, s20, s18'); a('s_cmp_lt_u32 s22, s17'); a(f's_cbranch_scc1 L_{name}_loop')
    a('s_waitcnt vmcnt(0)')
    p.label(f'L_{name}_done'); a('s_endpgm')
    kdesc(p, name, 16, 16)

def build_l(path, launches, stamps=False, **kw):
    cfg = Cfg(); cfg.stamps = stamps
    for k, v in kw.items(): setattr(cfg, k, v)
    p = Prog()
    p.raw(HEADER.rstrip())
    L = {'attn': f'; @launch kernel=attn_kernel grid=(256,1,1) block=(512,1,1) lds={LDS_BYTES}',
         'red': '; @launch kernel=red_kernel grid=(1152,1,1) block=(64,1,1) lds=0',
         'empty': '; @launch kernel=empty_kernel grid=(1,1,1) block=(64,1,1) lds=0',
         'tail': '; @launch kernel=tail_kernel grid=(1,1,1) block=(64,1,1) lds=0'}
    for l in launches: p.raw(L[l])
    p.raw('.amdgcn_target "amdgcn-amd-amdhsa--gfx950"')
    attn_kernel(p, 'attn_kernel', cfg)
    reduce_kernel(p, 'red_kernel')
    if 'empty' in launches: empty_kernel(p, 'empty_kernel')
    if 'tail' in launches: tail_spin(p, 'tail_kernel', 10)
    open(path, 'w').write(p.text())

if __name__ == '__main__':
    kw = dict(dma_lo=0, dma_hi=0.75, prio=0)
    d = 'cdna_kernels/'
    build_l(d+'l_base.s', ['attn', 'red'], **kw)
    build_l(d+'l_red2.s', ['attn', 'red', 'red'], **kw)
    build_l(d+'l_e4.s', ['attn', 'red', 'empty', 'empty', 'empty', 'empty'], **kw)
    build_l(d+'l_e1pre.s', ['empty', 'attn', 'red'], **kw)
    build_l(d+'l_tail.s', ['attn', 'red', 'tail'], stamps=True, **kw)
    build_l(d+'l_tail0.s', ['attn', 'tail', 'red'], stamps=True, **kw)
```
